```python
import torch

def _softmax(x, axis=-1):
    return torch.softmax(x, dim=axis)
def _gelu(x):
    return torch.nn.functional.gelu(x, approximate="tanh")
def _silu(x):
    return torch.nn.functional.silu(x)
def _sigmoid(x):
    return torch.sigmoid(x)
def _layernorm(x, axis=-1, eps=1e-5):
    m = x.mean(dim=axis, keepdim=True)
    v = x.var(dim=axis, keepdim=True, unbiased=False)
    return (x - m) / torch.sqrt(v + eps)
def _scatter_add(tgt, idx, src, axis=0):
    return tgt.clone().index_add_(axis, idx, src)
def _segment_sum(src, seg, n):
    out = torch.zeros((n,) + src.shape[1:], dtype=src.dtype)
    return out.index_add_(0, seg, src)
def _pad(x, pw):
    flat = tuple(v for pair in reversed(pw) for v in pair)
    return torch.nn.functional.pad(x, flat)

kernel_name = 'standalone__mha_block_cached__near_ridge'

def setup_inputs():

    _w = (lambda a: (lambda t: t.to(torch.bfloat16) if t.is_floating_point() else t)(torch.as_tensor(a)))
    B, Sq, D = 16, 96, 512
    H, Sk, Dh = 32, 1024, 128
    return {
        "x": _w((lambda *s: torch.randn(*s, dtype=torch.bfloat16) * 0.8)(B, Sq, D)),
        "k_cache": _w((lambda *s: torch.randn(*s, dtype=torch.bfloat16) * 0.8)(B, H, Sk, Dh)),
        "v_cache": _w((lambda *s: torch.randn(*s, dtype=torch.bfloat16) * 0.05)(B, H, Sk, Dh)),
        "wq": _w((lambda *s: torch.randn(*s, dtype=torch.bfloat16) * 0.8)(D, H * Dh) * (D ** -0.5)),
        "wo": _w((lambda *s: torch.randn(*s, dtype=torch.bfloat16) * 0.05)(H * Dh, D) * ((H * Dh) ** -0.5)),
    }

def reference(x, k_cache, v_cache, wq, wo):
    B, Sq, D = x.shape
    H, Dh = 32, 128
    q = (lambda x, *d: x.permute(*d))((x @ wq).reshape(B, Sq, H, Dh), 0, 2, 1, 3)
    scores = torch.einsum("bhqd,bhkd->bhqk", q, k_cache) * (Dh ** -0.5)
    p = _softmax(scores, axis=-1)
    o = torch.einsum("bhqk,bhkd->bhqd", p, v_cache)
    return (lambda x, *d: x.permute(*d))(o, 0, 2, 1, 3).reshape(B, Sq, H * Dh) @ wo
```

```python
import re

REG_RE = re.compile(r'^(-|\|)?(abs\()?([vas])(\d+|\[(\d+):(\d+)\])\)?\|?$')


def expand(tok):
    t = tok.strip()
    if t in ('vcc', 'exec'):
        return [t]
    if t in ('vcc_lo', 'vcc_hi'):
        return ['vcc']
    if t in ('exec_lo', 'exec_hi'):
        return ['exec']
    if t in ('m0', 'scc'):
        return [t]
    m = REG_RE.match(t)
    if not m:
        return []
    f = m.group(3)
    if m.group(5) is not None:
        return [f"{f}{i}" for i in range(int(m.group(5)), int(m.group(6)) + 1)]
    return [f"{f}{int(m.group(4))}"]


TRANS = ('v_exp_f32', 'v_log_f32', 'v_rcp_f32', 'v_rsq_f32', 'v_sqrt_f32', 'v_sin_f32', 'v_cos_f32', 'v_rcp_iflag_f32')
SALU_NO_SCC = ('s_mov_b32', 's_mov_b64', 's_mul_i32', 's_mul_hi_u32', 's_movk_i32', 's_getreg_b32', 's_getpc_b64',
               's_cselect_b32', 's_cselect_b64', 's_setreg_b32', 's_sext_i32_i16', 's_bitset1_b32', 's_bitset0_b32')


class I:
    __slots__ = ('text', 'op', 'ops', 'defs', 'uses', 'kind', 'pin', 'passes', 'srcc', 'srcab', 'target', 'mods',
                 'wide_store', 'note', 'prio', 'sdefs_valu')

    def __init__(self, text, mem_r=(), mem_w=(), pin=False, prio=0):
        self.text = text.strip()
        self.pin = pin
        self.prio = prio
        self.passes = 0
        self.srcc = []
        self.srcab = []
        self.target = None
        self.wide_store = []
        self.note = None
        t = self.text.split(';')[0].strip()
        if t.endswith(':'):
            self.op = 'label'
            self.target = t[:-1]
            self.kind = 'label'
            self.defs = []
            self.uses = []
            self.ops = []
            self.mods = []
            self.pin = True
            return
        sp = t.split(None, 1)
        op = sp[0]
        for suf in ('_e32', '_e64', '_dpp', '_sdwa'):
            if op.endswith(suf):
                op = op[:-len(suf)]
        self.op = op
        rest = sp[1] if len(sp) > 1 else ''
        parts = [p.strip() for p in rest.split(',')] if rest else []
        ops = []
        mods = []
        for k, p in enumerate(parts):
            ws = p.split()
            if not ws:
                continue
            ops.append(ws[0])
            mods += ws[1:]
        self.ops = ops
        self.mods = mods
        d, u = [], []
        E = expand
        k = None
        if op.startswith('v_mfma'):
            k = 'mfma'
            d = E(ops[0])
            self.srcab = E(ops[1]) + E(ops[2])
            self.srcc = E(ops[3])
            u = self.srcab + self.srcc
            if '32x32x16' in op or '32x32x8' in op:
                self.passes = 8
            elif '16x16x32' in op or '16x16x16' in op:
                self.passes = 4
            else:
                raise ValueError(op)
        elif op.startswith('v_cmpx'):
            raise ValueError('avoid v_cmpx')
        elif op.startswith('v_cmp'):
            k = 'valu'
            d = E(ops[0])
            for o in ops[1:]:
                u += E(o)
        elif op in ('v_readfirstlane_b32', 'v_readlane_b32'):
            k = 'valu'
            d = E(ops[0])
            for o in ops[1:]:
                u += E(o)
        elif op == 'v_writelane_b32':
            k = 'valu'
            d = E(ops[0])
            u = E(ops[0])
            for o in ops[1:]:
                u += E(o)
        elif op in ('v_permlane16_swap_b32', 'v_permlane32_swap_b32'):
            k = 'valu'
            d = E(ops[0]) + E(ops[1])
            u = list(d)
        elif op in ('v_fmac_f32', 'v_pk_fmac_f16', 'v_mac_f32', 'v_dot2c_f32_bf16'):
            k = 'valu'
            d = E(ops[0])
            u = E(ops[0])
            for o in ops[1:]:
                u += E(o)
        elif op == 'v_cndmask_b32':
            k = 'valu'
            d = E(ops[0])
            for o in ops[1:]:
                u += E(o)
            if len(ops) == 3:
                u.append('vcc')
        elif op in ('v_add_co_u32', 'v_sub_co_u32', 'v_subrev_co_u32'):
            k = 'valu'
            d = E(ops[0]) + E(ops[1])
            for o in ops[2:]:
                u += E(o)
        elif op in ('v_addc_co_u32', 'v_subb_co_u32'):
            k = 'valu'
            d = E(ops[0]) + E(ops[1])
            for o in ops[2:]:
                u += E(o)
        elif op == 'v_nop':
            k = 'valu'
        elif op.startswith('v_'):
            k = 'trans' if op in TRANS else 'valu'
            d = E(ops[0])
            for o in ops[1:]:
                u += E(o)
            if 'dpp' in self.text.split()[0] or any(m.startswith(('row_', 'quad_perm', 'wave_', 'row_bcast')) for m in mods):
                u += E(ops[0])
        elif op.startswith('ds_read') or op.startswith('ds_bpermute') or op.startswith('ds_swizzle') or op.startswith('ds_permute'):
            k = 'dsr'
            d = E(ops[0])
            for o in ops[1:]:
                u += E(o)
        elif op.startswith('ds_add_rtn') or op.startswith('ds_inc_rtn'):
            k = 'dsr'
            d = E(ops[0])
            for o in ops[1:]:
                u += E(o)
        elif op.startswith('ds_write') or op.startswith('ds_add') or op.startswith('ds_max') or op.startswith('ds_or'):
            k = 'dsw'
            for o in ops:
                u += E(o)
        elif op.startswith('buffer_load'):
            if 'lds' in mods:
                k = 'dma'
                for o in ops:
                    u += E(o)
                u.append('m0')
            else:
                k = 'vload'
                d = E(ops[0])
                for o in ops[1:]:
                    u += E(o)
        elif op.startswith('buffer_store'):
            k = 'vstore'
            for o in ops:
                u += E(o)
            if op.endswith(('x3', 'x4')):
                self.wide_store = E(ops[0])
        elif op.startswith('buffer_atomic') or op.startswith('global_atomic'):
            k = 'vstore'
            if op.startswith('buffer_atomic'):
                for o in ops:
                    u += E(o)
                if 'sc0' in mods:
                    d = E(ops[0])
                    k = 'vload'
            else:
                if 'sc0' in mods:
                    d = E(ops[0])
                    k = 'vload'
                    for o in ops[1:]:
                        u += E(o)
                else:
                    for o in ops:
                        u += E(o)
        elif op.startswith('global_load_lds'):
            k = 'dma'
            for o in ops:
                u += E(o)
            u.append('m0')
        elif op.startswith('global_load'):
            k = 'vload'
            d = E(ops[0])
            for o in ops[1:]:
                u += E(o)
        elif op.startswith('global_store'):
            k = 'vstore'
            for o in ops:
                u += E(o)
            if op.endswith(('x3', 'x4')):
                self.wide_store = E(ops[1])
        elif op in ('buffer_wbl2', 'buffer_inv'):
            k = 'vstore'
            self.pin = True
        elif op.startswith('s_load') or op.startswith('s_buffer_load'):
            k = 'smem'
            d = E(ops[0])
            for o in ops[1:]:
                u += E(o)
            self.pin = True
        elif op in ('s_memtime', 's_memrealtime'):
            k = 'smem'
            d = E(ops[0])
            self.pin = True
        elif op == 's_waitcnt':
            k = 'wait'
            self.pin = True
        elif op == 's_barrier':
            k = 'barrier'
            self.pin = True
        elif op == 's_nop':
            k = 'nop'
            self.pin = True
        elif op in ('s_sleep', 's_setprio'):
            k = 'salu'
            self.pin = True
        elif op == 's_endpgm':
            k = 'end'
            self.pin = True
        elif op == 's_branch':
            k = 'branch'
            self.target = ops[0]
            self.pin = True
        elif op.startswith('s_cbranch'):
            k = 'cbranch'
            self.target = ops[0]
            self.pin = True
            if 'scc' in op:
                u = ['scc']
            elif 'vcc' in op:
                u = ['vcc']
            elif 'exec' in op:
                u = ['exec']
        elif op.startswith('s_cmp') or op.startswith('s_bitcmp'):
            k = 'salu'
            d = ['scc']
            for o in ops:
                u += E(o)
        elif op.startswith('s_') and 'saveexec' in op:
            k = 'salu'
            d = E(ops[0]) + ['exec', 'scc']
            u = ['exec']
            for o in ops[1:]:
                u += E(o)
            self.pin = True
        elif op.startswith('s_'):
            k = 'salu'
            d = E(ops[0])
            for o in ops[1:]:
                u += E(o)
            if op in ('s_addk_i32', 's_mulk_i32', 's_bitset1_b32', 's_bitset0_b32'):
                u += E(ops[0])
            if op not in SALU_NO_SCC and op != 's_mulk_i32':
                d = d + ['scc']
            if op in ('s_addc_u32', 's_subb_u32', 's_cselect_b32', 's_cselect_b64', 's_cmov_b32'):
                u.append('scc')
            if 'exec' in d:
                self.pin = True
        else:
            raise ValueError('unknown op: ' + self.text)
        self.kind = k
        self.defs = list(d) + ['@' + m for m in mem_w]
        self.uses = list(u) + ['@' + m for m in mem_r]
        if k in ('dma', 'vload', 'vstore'):
            self.defs.append('@vmq')
            self.uses.append('@vmq')

    def __repr__(self):
        return self.text


def issue_cost(i):
    k = i.kind
    if k == 'mfma':
        return 8
    if k == 'trans':
        return 8
    if k in ('dma', 'vload', 'vstore'):
        return 8
    if k in ('label',):
        return 0
    return 4


def latency(p, c, reg):
    if reg.startswith('@'):
        return issue_cost(p)
    if p.kind == 'mfma':
        if c.kind == 'mfma' and reg in c.srcc and p.defs[:len(c.srcc)] == c.srcc:
            return p.passes * 4
        return p.passes * 4 + 24
    if p.kind == 'dsr':
        return 96
    if p.kind == 'trans':
        return 12
    if p.kind == 'valu' and c.kind == 'mfma':
        return 12
    if p.kind == 'vload':
        return 600
    return issue_cost(p)


def schedule(insts, verbose=False, mode='order'):
    n = len(insts)
    if n <= 1:
        return list(insts)
    preds = [[] for _ in range(n)]
    last_def = {}
    last_uses = {}
    for k, ins in enumerate(insts):
        for r in ins.uses:
            if r in last_def:
                p = last_def[r]
                preds[k].append((p, latency(insts[p], ins, r)))
        for r in ins.defs:
            if r in last_def:
                p = last_def[r]
                lat = issue_cost(insts[p])
                if insts[p].kind == 'mfma' and ins.kind != 'mfma':
                    lat = insts[p].passes * 4 + 24
                if insts[p].kind == 'dsr' and not r.startswith('@'):
                    lat = 96
                preds[k].append((p, lat))
            for p in last_uses.get(r, []):
                if p != k:
                    lat = issue_cost(insts[p])
                    if insts[p].kind == 'mfma' and r in insts[p].srcc and ins.kind == 'valu':
                        lat = insts[p].passes * 4
                    preds[k].append((p, lat))
        for r in ins.uses:
            last_uses.setdefault(r, []).append(k)
        for r in ins.defs:
            last_def[r] = k
            last_uses[r] = []
    succs = [[] for _ in range(n)]
    for k in range(n):
        for p, lat in preds[k]:
            succs[p].append((k, lat))
    cp = [0] * n
    for k in range(n - 1, -1, -1):
        best = 0
        for s, lat in succs[k]:
            best = max(best, lat + cp[s])
        cp[k] = best + (0 if succs[k] else issue_cost(insts[k]))
    npred = [len(set(p for p, _ in preds[k])) for k in range(n)]
    ready_t = [0] * n
    done = [False] * n
    avail = [k for k in range(n) if npred[k] == 0]
    now = 0
    mfma_free = 0
    out = []
    succ_sets = [set(s for s, _ in succs[k]) for k in range(n)]
    while avail:
        def start_time(k):
            t = max(now, ready_t[k])
            if insts[k].kind == 'mfma':
                t = max(t, mfma_free)
            return t
        cand = [k for k in avail if start_time(k) <= now]
        if cand:
            mf = [k for k in cand if insts[k].kind == 'mfma']
            hi = [k for k in cand if insts[k].prio > 0]
            if hi:
                k = max(hi, key=lambda x: (insts[x].prio, -x))
            elif mf:
                k = max(mf, key=lambda x: (cp[x], -x) if mode == 'cp' else (0, -x))
            else:
                k = max(cand, key=lambda x: (insts[x].prio, cp[x], -x) if mode == 'cp' else (insts[x].prio, 0, -x))
        else:
            k = min(avail, key=lambda x: (start_time(x), -insts[x].prio, -cp[x], x))
        t = start_time(k)
        ins = insts[k]
        out.append(ins)
        avail.remove(k)
        done[k] = True
        now = t + issue_cost(ins)
        if ins.kind == 'mfma':
            mfma_free = t + ins.passes * 4
        for s, lat in succs[k]:
            ready_t[s] = max(ready_t[s], t + lat)
        for s in succ_sets[k]:
            npred[s] -= 1
            if npred[s] == 0:
                avail.append(s)
    assert len(out) == n
    if verbose:
        print(f"; region of {n} instrs scheduled, est {now} cycles")
    return out, now


class Prog:
    def __init__(self):
        self.items = []
        self.cur = None
        self.est = []

    def raw(self, s):
        assert self.cur is None
        self.items.append(s)

    def e(self, text, **kw):
        ins = I(text, **kw)
        if self.cur is not None:
            assert not ins.pin, f"pinned instr inside a scheduled region: {text}"
            self.cur.append(ins)
        else:
            self.items.append(ins)
        return ins

    def label(self, name):
        self.e(name + ':')

    def begin(self):
        assert self.cur is None
        self.cur = []

    def end(self, name='', sched=True, mode='order'):
        r = self.cur
        self.cur = None
        if sched and len(r) > 1:
            r, est = schedule(r, mode=mode)
            self.est.append((name, len(r), est))
        self.items += r

    def _cfg(self):
        ins = self.items
        n = len(ins)
        labels = {}
        for k, i in enumerate(ins):
            if isinstance(i, I) and i.kind == 'label':
                labels[i.target] = k
        preds = [[] for _ in range(n)]
        prev = None
        for k, i in enumerate(ins):
            if not isinstance(i, I):
                continue
            if prev is not None and ins[prev].kind not in ('branch', 'end'):
                preds[k].append(prev)
            if i.kind in ('branch', 'cbranch'):
                preds[labels[i.target]].append(k)
            prev = k
        return preds

    @staticmethod
    def states(i):
        if i.kind == 'label':
            return 0
        if i.kind == 'nop':
            return int(i.ops[0], 0) + 1
        return 1

    @staticmethod
    def hazard(p, c):
        need = 0
        pd = set(r for r in p.defs if not r.startswith('@'))
        cu = set(r for r in c.uses if not r.startswith('@'))
        cd = set(r for r in c.defs if not r.startswith('@'))
        isv = lambda r: r[0] in 'va' and r not in ('vcc',)
        iss = lambda r: (r[0] == 's' and r != 'scc') or r == 'vcc'
        valu_p = p.kind in ('valu', 'trans')
        valu_c = c.kind in ('valu', 'trans')
        if valu_p:
            vd = set(r for r in pd if isv(r))
            sd = set(r for r in pd if iss(r))
            if c.kind == 'mfma' and vd & cu:
                need = max(need, 2)
            if c.op in ('v_readfirstlane_b32', 'v_readlane_b32') and vd & cu:
                need = max(need, 1)
            if c.op.startswith('v_permlane') and vd & cu:
                need = max(need, 2)
            if valu_c and ('dpp' in c.text.split()[0]) and vd & cu:
                need = max(need, 2)
            if p.kind == 'trans' and valu_c and vd & cu:
                need = max(need, 1)
            if p.kind == 'trans' and c.kind in ('dsw', 'dsr', 'vstore', 'vload', 'dma') and vd & cu:
                need = max(need, 1)
            if sd:
                if c.op in ('v_readlane_b32', 'v_writelane_b32') and sd & set(expand(c.ops[-1])):
                    need = max(need, 4)
                if valu_c and sd & cu:
                    need = max(need, 2)
                if c.kind in ('dma', 'vload', 'vstore') and sd & cu:
                    need = max(need, 5)
                if c.kind in ('salu', 'smem', 'cbranch') and sd & cu:
                    need = max(need, 4)
            if 'exec' in pd:
                raise ValueError('valu exec write')
        if p.kind == 'salu':
            if 'm0' in pd and (c.kind == 'dma' or 'm0' in cu):
                need = max(need, 1)
            if 'exec' in pd and c.kind == 'mfma':
                need = max(need, 4)
            if 'exec' in pd and valu_c and 'dpp' in c.text.split()[0]:
                need = max(need, 5)
        if p.kind == 'mfma':
            P = p.passes
            full = {2: 5, 4: 8, 8: 12, 16: 20}[P]
            if c.kind == 'mfma':
                if pd & set(c.srcab):
                    need = max(need, full)
                ov = pd & set(c.srcc)
                if ov:
                    if list(p.defs) == list(c.srcc) and p.passes == c.passes:
                        pass
                    else:
                        need = max(need, {2: 4, 4: 6, 8: 10, 16: 18}[P])
                if (pd & cd) and not ov:
                    need = max(need, {2: 4, 4: 6, 8: 10, 16: 18}[P])
            else:
                if pd & (cu | cd):
                    need = max(need, full)
                if valu_c and (set(p.srcc) & cd):
                    need = max(need, {2: 1, 4: 3, 8: 7, 16: 15}[P])
                if c.kind in ('dsr', 'vload') and (set(p.srcc) & cd):
                    need = max(need, {2: 1, 4: 3, 8: 7, 16: 15}[P])
        if p.wide_store:
            if set(p.wide_store) & cd:
                need = max(need, 2)
        return need

    def fix_hazards(self):
        MAXD = 21
        total = 0
        changed = True
        while changed:
            changed = False
            preds = self._cfg()
            k = 0
            while k < len(self.items):
                ins = self.items
                c = ins[k]
                if not isinstance(c, I) or c.kind in ('label', 'nop', 'wait', 'barrier', 'end', 'branch'):
                    k += 1
                    continue
                worst = 0
                stack = [(p, 0) for p in preds[k]]
                seen = {}
                while stack:
                    p, dist = stack.pop()
                    if dist >= MAXD:
                        continue
                    if p in seen and seen[p] <= dist:
                        continue
                    seen[p] = dist
                    pi = ins[p]
                    if pi.kind not in ('label', 'nop', 'wait', 'barrier'):
                        h = self.hazard(pi, c)
                        if h - dist > worst:
                            worst = h - dist
                    nd = dist + self.states(pi)
                    for q in preds[p]:
                        stack.append((q, nd))
                if worst > 0:
                    changed = True
                    w = worst
                    total += w
                    while w > 0:
                        m = min(w, 16)
                        self.items.insert(k, I(f"s_nop {m - 1}"))
                        k += 1
                        w -= m
                    preds = self._cfg()
                k += 1
        return total

    def insert_lgkm_waits(self):
        nins = 0
        asyncregs = set()
        for i in self.items:
            if isinstance(i, I) and i.kind in ('dsr', 'smem'):
                asyncregs |= set(r for r in i.defs if not r.startswith('@'))
        changed = True
        while changed:
            changed = False
            preds = self._cfg()
            k = 0
            while k < len(self.items):
                ins = self.items
                c = ins[k]
                if not isinstance(c, I) or c.kind in ('label', 'nop', 'wait', 'end', 'branch'):
                    k += 1
                    continue
                regs = frozenset(r for r in (c.uses + c.defs) if r in asyncregs)
                if not regs:
                    k += 1
                    continue
                best = None
                stack = [(p, 0, None, regs) for p in preds[k]]
                seen = set()
                while stack:
                    p, cnt, cover, rem = stack.pop()
                    key = (p, min(cnt, 17), cover if cover is None else min(cover, 40), rem)
                    if key in seen:
                        continue
                    seen.add(key)
                    pi = ins[p]
                    ncnt = cnt
                    ncover = cover
                    nrem = rem
                    if pi.kind == 'wait':
                        m = re.search(r'lgkmcnt\((\d+)\)', pi.text)
                        if m:
                            nwait = int(m.group(1))
                            if nwait == 0:
                                continue
                            x = cnt + nwait
                            if ncover is None or x < ncover:
                                ncover = x
                    else:
                        hit = rem & set(pi.defs)
                        if hit:
                            if pi.kind == 'dsr':
                                if cover is None or cnt < cover:
                                    nw = min(cnt, 15)
                                    if best is None or nw < best:
                                        best = nw
                            elif pi.kind == 'smem':
                                raise ValueError(f"smem result {pi.text} consumed by {c.text} without lgkmcnt(0)")
                            nrem = rem - hit
                            if not nrem:
                                continue
                        if pi.kind in ('dsr', 'dsw'):
                            ncnt = cnt + 1
                        elif pi.kind == 'smem':
                            ncnt = cnt + 2
                    if ncover is not None and ncnt >= ncover:
                        continue
                    for q in preds[p]:
                        stack.append((q, min(ncnt, 41), ncover, nrem))
                if best is not None:
                    self.items.insert(k, I(f"s_waitcnt lgkmcnt({best})"))
                    nins += 1
                    changed = True
                    preds = self._cfg()
                    k += 1
                k += 1
        return nins

    def finalize(self):
        a = self.insert_lgkm_waits()
        b = self.fix_hazards()
        return a, b

    def text(self):
        out = []
        for i in self.items:
            if isinstance(i, I):
                out.append(i.text if i.kind == 'label' else '    ' + i.text)
            else:
                out.append(i)
        return '\n'.join(out) + '\n'
```

```python
import sys
sys.path.insert(0, "gen")
from sched import Prog, I

KN = "standalone__mha_block_cached__near_ridge_kernel"
KN2 = "mha_outproj_kernel"

XB = 16 * 96 * 512 * 2
KVB = 16 * 32 * 1024 * 128 * 2
WQB = 512 * 4096 * 2
WOB = 4096 * 512 * 2
OUTB = 16 * 96 * 512 * 2
WSB = 536870912
WS_O = 0
WS_WOP = 0x1000000
WS_TRACE = 0x2000000
QSCALE = 0x3E029424
import struct, math
QSCALE = struct.unpack('<I', struct.pack('<f', math.log2(math.e) / math.sqrt(128.0)))[0]
THRESH = 8.0

LDS_K = 0x0000
LDS_V = 0x8000
LDS_AUX = 0x10000
CHUNK = 28 * 1024
LDS_TOTAL = 0x28000

sX, sK, sV, sWQ, sWO, sWS, sOUT = 20, 24, 28, 32, 36, 40, 44
sW, sI, sJ, sH, sB, sCNT, sKVG, sMK, sMV = 48, 49, 50, 51, 52, 53, 54, 55, 56
sT0, sT1, sT2, sT3 = 57, 58, 59, 60
sXF = 61
sWQG = 64
sAUXM = 65
sTR = 66
sTRP = 68


def srd(n):
    return f"s[{n}:{n + 3}]"


def vr(n, k=1):
    return f"v{n}" if k == 1 else f"v[{n}:{n + k - 1}]"


def ar(n, k=1):
    return f"a{n}" if k == 1 else f"a[{n}:{n + k - 1}]"


vKd, vVd, vKr, vVr, vWd, vXd, vLin, vWr = 2, 6, 8, 12, 20, 22, 23, 24
vT = 26
vS = 32
vNM = 56
vP = 68
vO = 80
vL = 176
vONE = 188
vM = 192
vR = 208
vTRC = 1
aQ, aK, aV, aX, aW = 0, 48, 80, 112, 160


def S(kt, qt): return vS + (kt * 3 + qt) * 4
def O(dt, qt): return vO + (dt * 3 + qt) * 4
def QA(dt2, qt6): return vO + (dt2 * 6 + qt6) * 4
def Qf(s, qt): return aQ + (s * 3 + qt) * 4
def Kf(kt, s): return aK + (kt * 4 + s) * 4
def Vf(dt): return aV + dt * 4


MF = "v_mfma_f32_16x16x32_bf16"


class Gen:
    def __init__(self, trace=False, fused=False, nt="nt"):
        self.p = Prog()
        self.trace = trace
        self.nt = nt
        self.ntr = 0
        self.lab = 0

    def L(self, s):
        self.lab += 1
        return f"{s}_{self.lab}"

    def stamp(self):
        if not self.trace:
            return
        p = self.p
        p.e(f"s_memrealtime s[{sTRP}:{sTRP + 1}]")
        p.e("s_waitcnt lgkmcnt(0)")
        p.e(f"v_writelane_b32 v{vTRC}, s{sTRP}, {self.ntr}")
        self.ntr += 1

    def stamp_dyn(self):
        if not self.trace:
            return
        p = self.p
        p.e(f"s_memrealtime s[{sTRP}:{sTRP + 1}]")
        p.e("s_waitcnt lgkmcnt(0)")
        p.e(f"s_mov_b32 m0, s{sTR}")
        p.e("s_nop 0")
        p.e(f"v_writelane_b32 v{vTRC}, s{sTRP}, m0")
        p.e(f"s_add_u32 s{sTR}, s{sTR}, 1")

    def trace_dump(self):
        if not self.trace:
            return
        p = self.p
        p.e(f"s_lshl_b32 s{sT0}, s2, 2")
        p.e(f"s_add_u32 s{sT0}, s{sT0}, s{sW}")
        p.e(f"s_lshl_b32 s{sT0}, s{sT0}, 8")
        p.e(f"s_add_u32 s{sT0}, s{sT0}, {WS_TRACE}")
        p.e(f"v_lshrrev_b32 v{vT}, 2, v{vLin}")
        p.e(f"buffer_store_dword v{vTRC}, v{vT}, {srd(sWS)}, s{sT0} offen")

    def load_args(self):
        p = self.p
        p.e("s_cmp_ge_u32 s2, 256")
        p.e("s_cbranch_scc1 L_end" + self.suffix)
        p.e("s_load_dwordx16 s[4:19], s[0:1], 0")
        p.e("v_lshrrev_b32 v1, 6, v0")
        p.e("v_and_b32 v0, 63, v0")
        p.e(f"v_readfirstlane_b32 s{sW}, v1")
        p.e(f"v_lshlrev_b32 v{vLin}, 4, v0")
        p.e("s_waitcnt lgkmcnt(0)")
        for n, ptr, size in ((sX, 4, XB), (sK, 6, KVB), (sV, 8, KVB), (sWQ, 10, WQB), (sWO, 12, WOB), (sWS, 18, WSB), (sOUT, 14, OUTB)):
            p.e(f"s_mov_b32 s{n}, s{ptr}")
            p.e(f"s_mov_b32 s{n + 1}, s{ptr + 1}")
            p.e(f"s_mov_b32 s{n + 2}, {size:#x}")
            p.e(f"s_mov_b32 s{n + 3}, 0x20000")

    def setup_addr(self):
        p = self.p
        t0, t1, t2, t3 = vT, vT + 1, vT + 2, vT + 3
        p.e(f"s_lshr_b32 s{sI}, s{sW}, 1")
        p.e(f"s_and_b32 s{sJ}, s{sW}, 1")
        p.e(f"v_lshrrev_b32 v{t0}, 4, v0")
        p.e(f"v_and_b32 v{t1}, 15, v0")
        p.e(f"v_xor_b32 v{t2}, v{t1}, v{t0}")
        p.e(f"v_lshlrev_b32 v{t2}, 4, v{t2}")
        p.e(f"v_lshl_add_u32 v{vKd}, v{t0}, 8, v{t2}")
        for ii in range(1, 4):
            p.e(f"v_xor_b32 v{vKd + ii}, {ii << 6}, v{vKd}")
        p.e(f"v_lshlrev_b32 v{t2}, 1, v{t0}")
        p.e(f"v_xor_b32 v{t2}, v{t1}, v{t2}")
        p.e(f"v_lshlrev_b32 v{t2}, 4, v{t2}")
        p.e(f"v_lshl_add_u32 v{vVd}, v{t0}, 8, v{t2}")
        p.e(f"v_xor_b32 v{vVd + 1}, 0x80, v{vVd}")
        p.e(f"v_lshl_add_u32 v{vWd}, v{t0}, 13, v{t2}")
        p.e(f"v_xor_b32 v{vWd + 1}, 0x80, v{vWd}")
        p.e(f"v_lshlrev_b32 v{t2}, 4, v{t0}")
        p.e(f"v_lshl_add_u32 v{vXd}, v{t1}, 10, v{t2}")
        p.e(f"v_xor_b32 v{t2}, v{t0}, v{t1}")
        p.e(f"v_lshlrev_b32 v{t2}, 4, v{t2}")
        p.e(f"v_lshl_add_u32 v{t2}, v{t1}, 8, v{t2}")
        p.e(f"s_lshl_b32 s{sT0}, s{sJ}, 13")
        p.e(f"s_add_u32 s{sT0}, s{sT0}, {LDS_K}")
        p.e(f"v_add_u32 v{vKr}, s{sT0}, v{t2}")
        for s in range(1, 4):
            p.e(f"v_xor_b32 v{vKr + s}, {s << 6}, v{vKr}")
        p.e(f"v_lshrrev_b32 v{t2}, 2, v0")
        p.e(f"v_and_b32 v{t3}, 7, v{t2}")
        p.e(f"v_lshlrev_b32 v{t3}, 5, v{t3}")
        p.e(f"v_lshl_add_u32 v{t2}, v{t2}, 8, v{t3}")
        p.e(f"v_and_b32 v{t3}, 3, v0")
        p.e(f"v_lshl_add_u32 v{t2}, v{t3}, 3, v{t2}")
        p.e(f"s_lshl_b32 s{sT0}, s{sJ}, 13")
        p.e(f"s_add_u32 s{sT0}, s{sT0}, {LDS_V}")
        p.e(f"s_lshl_b32 s{sT1}, s{sJ}, 7")
        p.e(f"v_xor_b32 v{vVr}, s{sT1}, v{t2}")
        p.e(f"v_add_u32 v{vVr}, s{sT0}, v{vVr}")
        for dt in range(1, 8):
            p.e(f"v_xor_b32 v{vVr + dt}, {dt << 5}, v{vVr}")
        p.e(f"s_lshl_b32 s{sT1}, s{sW}, 6")
        p.e(f"v_xor_b32 v{vWr}, s{sT1}, v{t2}")
        p.e(f"v_add_u32 v{vWr}, {LDS_AUX}, v{vWr}")
        p.e(f"v_xor_b32 v{vWr + 1}, 0x20, v{vWr}")
        for k in range(4):
            p.e(f"v_mov_b32 v{vONE + k}, 0x3f803f80")

    def set_head(self, rnd):
        p = self.p
        p.e(f"s_and_b32 s{sT0}, s2, 7")
        p.e(f"s_lshl_b32 s{sT0}, s{sT0}, 2")
        p.e(f"s_lshr_b32 s{sT1}, s2, 3")
        p.e(f"s_and_b32 s{sT2}, s{sT1}, 3")
        p.e(f"s_add_u32 s{sH}, s{sT0}, s{sT2}")
        p.e(f"s_lshr_b32 s{sB}, s{sT1}, 2")
        if rnd:
            p.e(f"s_add_u32 s{sB}, s{sB}, {8 * rnd}")

    def kv_base(self, dst):
        p = self.p
        p.e(f"s_lshl_b32 s{dst}, s{sB}, 5")
        p.e(f"s_add_u32 s{dst}, s{dst}, s{sH}")
        p.e(f"s_lshl_b32 s{dst}, s{dst}, 18")
        p.e(f"s_lshl_b32 s{sT0}, s{sW}, 12")
        p.e(f"s_add_u32 s{dst}, s{dst}, s{sT0}")

    def dma_kv(self, prio=10):
        p = self.p
        p.e(f"s_mov_b32 m0, s{sMK}", prio=prio)
        for ii in range(4):
            p.e(f"buffer_load_dwordx4 v{vKd + ii}, {srd(sK)}, s{sKVG} offen offset:{ii * 1024} {self.nt} lds", prio=prio)
        p.e(f"s_mov_b32 m0, s{sMV}", prio=prio)
        for ii in range(4):
            p.e(f"buffer_load_dwordx4 v{vVd + (ii & 1)}, {srd(sV)}, s{sKVG} offen offset:{ii * 1024} {self.nt} lds", prio=prio)
        p.e(f"s_add_u32 s{sKVG}, s{sKVG}, 16384", prio=prio)
        p.e(f"s_xor_b32 s{sMK}, s{sMK}, 0x4000", prio=prio)
        p.e(f"s_xor_b32 s{sMV}, s{sMV}, 0x4000", prio=prio)

    def qproj_setup(self):
        p = self.p
        p.e(f"s_mul_i32 s{sT0}, s{sB}, 98304")
        p.e(f"s_mul_i32 s{sT1}, s{sW}, 3")
        for n in range(3):
            p.e(f"s_add_u32 s{sT2}, s{sT1}, {n}")
            p.e(f"s_lshr_b32 s{sT3}, s{sT2}, 1")
            p.e(f"s_lshl_b32 s{sT3}, s{sT3}, 14")
            p.e(f"s_and_b32 s{sT2}, s{sT2}, 1")
            p.e(f"s_lshl_b32 s{sT2}, s{sT2}, 6")
            p.e(f"s_add_u32 s{sT3}, s{sT3}, s{sT2}")
            p.e(f"s_add_u32 s{sXF + n}, s{sT3}, s{sT0}")
        p.e(f"s_lshl_b32 s{sT0}, s{sI}, 5")
        p.e(f"s_lshl_b32 s{sT1}, s{sJ}, 2")
        p.e(f"s_add_u32 s{sT0}, s{sT0}, s{sT1}")
        p.e(f"s_lshl_b32 s{sT0}, s{sT0}, 13")
        p.e(f"s_lshl_b32 s{sT1}, s{sH}, 8")
        p.e(f"s_add_u32 s{sWQG}, s{sT0}, s{sT1}")

    def dma_chunk(self, c, prio=10):
        p = self.p
        base = LDS_AUX + (c % 3) * CHUNK
        p.e(f"s_mul_i32 s{sT0}, s{sW}, 3072", prio=prio)
        for n in range(3):
            p.e(f"s_add_u32 m0, s{sT0}, {base + n * 1024}", prio=prio)
            p.e(f"s_add_u32 s{sT1}, s{sXF + n}, {c * 128}", prio=prio)
            p.e(f"buffer_load_dwordx4 v{vXd}, {srd(sX)}, s{sT1} offen lds", prio=prio)
        p.e(f"s_lshl_b32 s{sT0}, s{sW}, 12", prio=prio)
        for i4 in range(4):
            p.e(f"s_add_u32 m0, s{sT0}, {base + 12288 + i4 * 1024}", prio=prio)
            p.e(f"s_add_u32 s{sT1}, s{sWQG}, {(c * 64 + 8 * i4) * 8192}", prio=prio)
            p.e(f"buffer_load_dwordx4 v{vWd + (i4 & 1)}, {srd(sWQ)}, s{sT1} offen lds", prio=prio)

    def qproj_chunk(self, c):
        p = self.p
        base = (c % 3) * CHUNK
        vXr, vW0 = vT + 3, vT + 4
        p.e(f"v_add_u32 v{vXr}, {LDS_AUX + base}, v{vLin}")
        p.e(f"v_add_u32 v{vW0}, {base + 12288}, v{vWr}")
        p.e(f"v_add_u32 v{vW0 + 1}, {base + 12288}, v{vWr + 1}")
        for ks in range(2):
            for qt6 in range(6):
                fi = 2 * qt6 + ks
                p.e(f"ds_read_b128 {ar(aX + (ks * 6 + qt6) * 4, 4)}, v{vXr} offset:{fi * 1024}")
            for dt2 in range(2):
                a0 = aW + (ks * 2 + dt2) * 4
                off = ks * 8192
                p.e(f"ds_read_b64_tr_b16 {ar(a0, 2)}, v{vW0 + dt2} offset:{off}")
                p.e(f"ds_read_b64_tr_b16 {ar(a0 + 2, 2)}, v{vW0 + dt2} offset:{off + 4096}")
        for ks in range(2):
            for dt2 in range(2):
                for qt6 in range(6):
                    acc = vr(QA(dt2, qt6), 4)
                    cin = "0" if (c == 0 and ks == 0) else acc
                    p.e(f"{MF} {acc}, {ar(aW + (ks * 2 + dt2) * 4, 4)}, {ar(aX + (ks * 6 + qt6) * 4, 4)}, {cin}")

    def qproj(self, counts):
        p = self.p
        for c in range(8):
            p.e(f"s_waitcnt vmcnt({counts[c]})")
            p.e("s_barrier")
            p.begin()
            if 1 <= c and c + 2 < 8:
                self.dma_chunk(c + 2)
            self.qproj_chunk(c)
            p.end(f"qproj{c}")
        t0, t1, t2, t3 = vT, vT + 1, vT + 2, vT + 3
        p.begin()
        p.e(f"v_lshrrev_b32 v{t0}, 4, v0")
        p.e(f"v_and_b32 v{t1}, 15, v0")
        p.e(f"v_lshrrev_b32 v{t2}, 1, v{t0}")
        p.e(f"s_lshl_b32 s{sT0}, s{sW}, 2")
        p.e(f"v_add_u32 v{t2}, s{sT0}, v{t2}")
        p.e(f"v_xor_b32 v{t2}, v{t2}, v{t1}")
        p.e(f"v_lshlrev_b32 v{t2}, 4, v{t2}")
        p.e(f"v_lshl_add_u32 v{t2}, v{t1}, 8, v{t2}")
        p.e(f"v_and_b32 v{t0}, 1, v{t0}")
        p.e(f"v_lshl_add_u32 v{t2}, v{t0}, 3, v{t2}")
        p.e(f"v_add_u32 v{t2}, {LDS_AUX}, v{t2}")
        p.e(f"v_xor_b32 v{t3}, 0x20, v{t2}")
        p.e(f"s_mov_b32 s{sT1}, {QSCALE:#x}")
        for dt2 in range(2):
            for qt6 in range(6):
                q = QA(dt2, qt6)
                for r in range(4):
                    p.e(f"v_mul_f32 v{q + r}, s{sT1}, v{q + r}")
                p.e(f"v_cvt_pk_bf16_f32 v{q}, v{q}, v{q + 1}")
                p.e(f"v_cvt_pk_bf16_f32 v{q + 1}, v{q + 2}, v{q + 3}")
                p.e(f"ds_write_b64 v{t2 + dt2}, {vr(q, 2)} offset:{qt6 * 4096}")
        p.end("qcvt")
        p.e("s_waitcnt lgkmcnt(0)")
        p.e("s_barrier")
        p.begin()
        p.e(f"v_lshrrev_b32 v{t0}, 4, v0")
        p.e(f"v_and_b32 v{t1}, 15, v0")
        p.e(f"v_xor_b32 v{t2}, v{t0}, v{t1}")
        p.e(f"v_lshlrev_b32 v{t2}, 4, v{t2}")
        p.e(f"v_lshl_add_u32 v{t2}, v{t1}, 8, v{t2}")
        p.e(f"s_mul_i32 s{sT0}, s{sI}, {48 * 256}")
        p.e(f"s_add_u32 s{sT0}, s{sT0}, {LDS_AUX}")
        p.e(f"v_add_u32 v{t2}, s{sT0}, v{t2}")
        for s in range(4):
            if s:
                p.e(f"v_xor_b32 v{vM + s}, {s << 6}, v{t2}")
            else:
                p.e(f"v_mov_b32 v{vM}, v{t2}")
        for s in range(4):
            for qt in range(3):
                p.e(f"ds_read_b128 {ar(Qf(s, qt), 4)}, v{vM + s} offset:{qt * 4096}")
        p.end("qread")

    def wo_prep_issue(self):
        p = self.p
        t0, t1 = vT, vT + 1
        p.e(f"v_lshrrev_b32 v{t0}, 3, v0")
        p.e(f"v_and_b32 v{t1}, 7, v0")
        p.e(f"v_lshlrev_b32 v{t1}, 4, v{t1}")
        p.e(f"v_lshl_add_u32 v{vM + 8}, v{t0}, 10, v{t1}")
        p.e(f"s_lshr_b32 s{sT0}, s2, 3")
        p.e(f"s_lshl_b32 s{sT0}, s{sT0}, 2")
        p.e(f"s_add_u32 s{sT0}, s{sT0}, s{sW}")
        p.e(f"s_lshl_b32 s{sT0}, s{sT0}, 15")
        p.e(f"s_and_b32 s{sT1}, s2, 7")
        p.e(f"s_lshl_b32 s{sT1}, s{sT1}, 7")
        p.e(f"s_add_u32 s{sT0}, s{sT0}, s{sT1}")
        p.e(f"s_lshl_b32 s{sT2}, s{sW}, 12")
        for ii in range(4):
            p.e(f"s_add_u32 m0, s{sT2}, {LDS_K + 0x4000 + ii * 1024}")
            p.e(f"s_add_u32 s{sT1}, s{sT0}, {ii * 8192}")
            p.e(f"buffer_load_dwordx4 v{vM + 8}, {srd(sWO)}, s{sT1} offen lds")

    def wo_prep_finish(self):
        p = self.p
        t0, t1 = vT, vT + 1
        p.begin()
        p.e(f"v_lshrrev_b32 v{t0}, 2, v0")
        p.e(f"v_lshlrev_b32 v{t0}, 7, v{t0}")
        p.e(f"v_and_b32 v{t1}, 3, v0")
        p.e(f"v_lshl_add_u32 v{t0}, v{t1}, 4, v{t0}")
        p.e(f"s_lshl_b32 s{sT0}, s{sW}, 12")
        p.e(f"s_add_u32 s{sT0}, s{sT0}, {LDS_K + 0x4000}")
        p.e(f"v_add_u32 v{t0}, s{sT0}, v{t0}")
        p.e(f"s_and_b32 s{sT0}, s2, 7")
        p.e(f"s_lshl_b32 s{sT0}, s{sT0}, 6")
        p.e(f"s_lshr_b32 s{sT1}, s2, 3")
        p.e(f"s_add_u32 s{sT0}, s{sT0}, s{sT1}")
        p.e(f"s_lshl_b32 s{sT0}, s{sT0}, 2")
        p.e(f"s_add_u32 s{sT0}, s{sT0}, s{sW}")
        p.e(f"s_lshl_b32 s{sT0}, s{sT0}, 11")
        p.e(f"s_add_u32 s{sT0}, s{sT0}, {WS_WOP}")
        p.e(f"s_add_u32 s{sT1}, s{sT0}, {32 * 4 * 2048}")
        for t in range(2):
            for c2 in range(2):
                d = vR + (t * 2 + c2) * 4
                off = 64 * t + 8 * c2
                p.e(f"ds_read_b64_tr_b16 {vr(d, 2)}, v{t0} offset:{off}")
                p.e(f"ds_read_b64_tr_b16 {vr(d + 2, 2)}, v{t0} offset:{off + 2048}")
        for t in range(2):
            for c2 in range(2):
                d = vR + (t * 2 + c2) * 4
                p.e(f"buffer_store_dwordx4 {vr(d, 4)}, v{vLin}, {srd(sWS)}, s{sT0 + t} offen offset:{c2 * 1024}")
        p.end("woprep")

    def k_reads(self):
        p = self.p
        for kt in range(2):
            for s in range(4):
                p.e(f"ds_read_b128 {ar(Kf(kt, s), 4)}, v{vKr + s} offset:{kt * 4096}")

    def v_reads(self):
        p = self.p
        for dt in range(8):
            p.e(f"ds_read_b64_tr_b16 {ar(Vf(dt), 2)}, v{vVr + dt}")
            p.e(f"ds_read_b64_tr_b16 {ar(Vf(dt) + 2, 2)}, v{vVr + dt} offset:4096")

    def qk(self, first):
        p = self.p
        for qt in range(3):
            for kt in range(2):
                for s in range(4):
                    acc = vr(S(kt, qt), 4)
                    if s == 0:
                        cin = "0" if first else vr(vNM + 4 * qt, 4)
                    else:
                        cin = acc
                    p.e(f"{MF} {acc}, {ar(Kf(kt, s), 4)}, {ar(Qf(s, qt), 4)}, {cin}")

    def tile_max(self, qt, dst):
        p = self.p
        a, b = S(0, qt), S(1, qt)
        p.e(f"v_max3_f32 v{dst}, v{a}, v{a + 1}, v{a + 2}")
        p.e(f"v_max3_f32 v{dst + 1}, v{a + 3}, v{b}, v{b + 1}")
        p.e(f"v_max3_f32 v{dst + 1}, v{dst + 1}, v{b + 2}, v{b + 3}")
        p.e(f"v_max_f32 v{dst}, v{dst}, v{dst + 1}")

    def xlane_max(self, r, tmp):
        p = self.p
        p.e(f"v_mov_b32 v{tmp}, v{r}")
        p.e(f"v_permlane16_swap_b32 v{r}, v{tmp}")
        p.e(f"v_max_f32 v{r}, v{r}, v{tmp}")
        p.e(f"v_mov_b32 v{tmp}, v{r}")
        p.e(f"v_permlane32_swap_b32 v{r}, v{tmp}")
        p.e(f"v_max_f32 v{r}, v{r}, v{tmp}")

    def exp_cvt(self):
        p = self.p
        for qt in range(3):
            for kt in range(2):
                s = S(kt, qt)
                for r in range(4):
                    p.e(f"v_exp_f32 v{s + r}, v{s + r}")
                p.e(f"v_cvt_pk_bf16_f32 v{vP + 4 * qt + 2 * kt}, v{s}, v{s + 1}")
                p.e(f"v_cvt_pk_bf16_f32 v{vP + 4 * qt + 2 * kt + 1}, v{s + 2}, v{s + 3}")

    def pv(self, first):
        p = self.p
        for qt in range(3):
            for dt in range(8):
                acc = vr(O(dt, qt), 4)
                p.e(f"{MF} {acc}, {ar(Vf(dt), 4)}, {vr(vP + 4 * qt, 4)}, {'0' if first else acc}")
            acc = vr(vL + 4 * qt, 4)
            p.e(f"{MF} {acc}, {vr(vONE, 4)}, {vr(vP + 4 * qt, 4)}, {'0' if first else acc}")

    def toggle_slots(self):
        p = self.p
        for k in range(4):
            p.e(f"v_xor_b32 v{vKr + k}, 0x4000, v{vKr + k}")
        for k in range(8):
            p.e(f"v_xor_b32 v{vVr + k}, 0x4000, v{vVr + k}")

    def tile(self, first, rare_label=None, back_label=None, dma=True):
        p = self.p
        p.e("s_waitcnt vmcnt(0)")
        p.e("s_barrier")
        if dma == 'cond':
            skip = self.L("L_nodma")
            p.e(f"s_cmp_eq_u32 s{sCNT}, 1")
            p.e(f"s_cbranch_scc1 {skip}")
            self.dma_kv()
            p.label(skip)
        p.begin()
        if dma is True:
            self.dma_kv()
        self.k_reads()
        self.v_reads()
        self.qk(first)
        for qt in range(3):
            self.tile_max(qt, vM + 2 * qt)
        if first:
            for qt in range(3):
                self.xlane_max(vM + 2 * qt, vM + 2 * qt + 1)
                for k in range(4):
                    p.e(f"v_sub_f32 v{vNM + 4 * qt + k}, 0, v{vM + 2 * qt}")
                for kt in range(2):
                    for r in range(4):
                        x = S(kt, qt) + r
                        p.e(f"v_sub_f32 v{x}, v{x}, v{vM + 2 * qt}")
        else:
            p.e(f"v_max3_f32 v{vM + 6}, v{vM}, v{vM + 2}, v{vM + 4}")
            p.e(f"v_cmp_lt_f32 vcc, {THRESH_LIT}, v{vM + 6}")
        p.end("tileA")
        if not first:
            p.e(f"s_cbranch_vccnz {rare_label}")
            p.label(back_label)
        p.begin()
        self.exp_cvt()
        self.pv(first)
        self.toggle_slots()
        p.end("tileB")

    def rare(self, rare_label, back_label):
        p = self.p
        p.label(rare_label)
        for qt in range(3):
            m = vM + 2 * qt
            self.xlane_max(m, m + 1)
            p.e(f"v_max_f32 v{m}, 0, v{m}")
            for k in range(4):
                p.e(f"v_sub_f32 v{vNM + 4 * qt + k}, v{vNM + 4 * qt + k}, v{m}")
            for kt in range(2):
                for r in range(4):
                    x = S(kt, qt) + r
                    p.e(f"v_sub_f32 v{x}, v{x}, v{m}")
            p.e(f"v_sub_f32 v{m + 1}, 0, v{m}")
            p.e(f"v_exp_f32 v{m + 1}, v{m + 1}")
            for dt in range(8):
                for r in range(4):
                    x = O(dt, qt) + r
                    p.e(f"v_mul_f32 v{x}, v{x}, v{m + 1}")
            for r in range(4):
                x = vL + 4 * qt + r
                p.e(f"v_mul_f32 v{x}, v{x}, v{m + 1}")
        p.e(f"s_branch {back_label}")

    def attention(self, rnd, last_round):
        p = self.p
        rare, back, loop = self.L("L_rare"), self.L("L_back"), self.L("L_loop")
        self.rares.append((rare, back))
        self.tile(True)
        self.stamp_dyn()
        p.e(f"s_mov_b32 s{sCNT}, 15")
        p.label(loop)
        if last_round:
            self.tile(False, rare, back, dma='cond')
        else:
            sw = self.L("L_sw")
            p.e(f"s_cmp_lg_u32 s{sCNT}, 1")
            p.e(f"s_cbranch_scc1 {sw}")
            self.set_head(rnd + 1)
            self.kv_base(sKVG)
            p.label(sw)
            self.tile(False, rare, back)
        self.stamp_dyn()
        p.e(f"s_sub_u32 s{sCNT}, s{sCNT}, 1")
        p.e(f"s_cmp_lg_u32 s{sCNT}, 0")
        p.e(f"s_cbranch_scc1 {loop}")

    def epilogue(self, sBo, sHo):
        p = self.p
        EX = LDS_AUX
        t0 = vT
        p.begin()
        p.e(f"s_mul_i32 s{sT0}, s{sW}, {12 * 1024}")
        p.e(f"s_add_u32 s{sT0}, s{sT0}, {EX}")
        p.e(f"v_add_u32 v{t0}, s{sT0}, v{vLin}")
        for t in range(4):
            for qt in range(3):
                p.e(f"ds_write_b128 v{t0}, {vr(O(4 + t, qt), 4)} offset:{(t * 3 + qt) * 1024}")
        for qt in range(3):
            p.e(f"v_mov_b32 v{vM + qt}, v{vNM + 4 * qt}")
            p.e(f"v_mov_b32 v{vM + 3 + qt}, v{vL + 4 * qt}")
        p.e(f"v_lshrrev_b32 v{t0 + 1}, 1, v{vLin}")
        p.e(f"s_lshl_b32 s{sT1}, s{sW}, 11")
        p.e(f"s_add_u32 s{sT1}, s{sT1}, {EX + 48 * 1024}")
        p.e(f"v_add_u32 v{t0 + 1}, s{sT1}, v{t0 + 1}")
        for k in range(3):
            p.e(f"ds_write_b64 v{t0 + 1}, {vr(vM + 2 * k, 2)} offset:{512 * k}")
        p.end("epiw")
        p.e("s_waitcnt lgkmcnt(0)")
        p.e("s_barrier")
        p.begin()
        p.e(f"s_xor_b32 s{sT2}, s{sW}, 1")
        p.e(f"s_mul_i32 s{sT0}, s{sT2}, {12 * 1024}")
        p.e(f"s_add_u32 s{sT0}, s{sT0}, {EX}")
        p.e(f"v_add_u32 v{t0}, s{sT0}, v{vLin}")
        p.e(f"v_lshrrev_b32 v{t0 + 1}, 1, v{vLin}")
        p.e(f"s_lshl_b32 s{sT1}, s{sT2}, 11")
        p.e(f"s_add_u32 s{sT1}, s{sT1}, {EX + 48 * 1024}")
        p.e(f"v_add_u32 v{t0 + 1}, s{sT1}, v{t0 + 1}")
        for k in range(3):
            p.e(f"ds_read_b64 {vr(vM + 8 + 2 * k, 2)}, v{t0 + 1} offset:{512 * k}")
        for t in range(4):
            for qt in range(3):
                p.e(f"ds_read_b128 {vr(vR + (t * 3 + qt) * 4, 4)}, v{t0} offset:{(t * 3 + qt) * 1024}")
        for qt in range(3):
            nb, lb = vM + 8 + qt, vM + 11 + qt
            na, la = vNM + 4 * qt, vL + 4 * qt
            mn = vS + 4 * qt
            p.e(f"v_min_f32 v{mn}, v{na}, v{nb}")
            p.e(f"v_sub_f32 v{mn + 1}, v{mn}, v{na}")
            p.e(f"v_sub_f32 v{mn + 2}, v{mn}, v{nb}")
            p.e(f"v_exp_f32 v{mn + 1}, v{mn + 1}")
            p.e(f"v_exp_f32 v{mn + 2}, v{mn + 2}")
            p.e(f"v_mul_f32 v{mn + 3}, v{mn + 1}, v{la}")
            p.e(f"v_fmac_f32 v{mn + 3}, v{mn + 2}, v{lb}")
            p.e(f"v_rcp_f32 v{mn + 3}, v{mn + 3}")
            p.e(f"v_mul_f32 v{mn + 1}, v{mn + 1}, v{mn + 3}")
            p.e(f"v_mul_f32 v{mn + 2}, v{mn + 2}, v{mn + 3}")
            for t in range(4):
                o, rc = O(t, qt), vR + (t * 3 + qt) * 4
                for r in range(4):
                    p.e(f"v_mul_f32 v{o + r}, v{mn + 1}, v{o + r}")
                    p.e(f"v_fmac_f32 v{o + r}, v{mn + 2}, v{rc + r}")
        p.e(f"s_lshl_b32 s{sT0}, s{sBo}, 1")
        p.e(f"s_add_u32 s{sT0}, s{sT0}, s{sI}")
        p.e(f"s_lshl_b32 s{sT0}, s{sT0}, 5")
        p.e(f"s_add_u32 s{sT0}, s{sT0}, s{sHo}")
        p.e(f"s_lshl_b32 s{sT0}, s{sT0}, 1")
        p.e(f"s_add_u32 s{sT0}, s{sT0}, s{sJ}")
        p.e(f"s_mul_i32 s{sT0}, s{sT0}, 6144")
        if WS_O:
            p.e(f"s_add_u32 s{sT0}, s{sT0}, {WS_O}")
        p.e(f"s_add_u32 s{sT1}, s{sT0}, 3072")
        for u2 in range(2):
            for qt in range(3):
                d = vR + ((2 * u2) * 3 + qt) * 4
                a, b = O(2 * u2, qt), O(2 * u2 + 1, qt)
                p.e(f"v_cvt_pk_bf16_f32 v{d}, v{a}, v{a + 1}")
                p.e(f"v_cvt_pk_bf16_f32 v{d + 1}, v{a + 2}, v{a + 3}")
                p.e(f"v_cvt_pk_bf16_f32 v{d + 2}, v{b}, v{b + 1}")
                p.e(f"v_cvt_pk_bf16_f32 v{d + 3}, v{b + 2}, v{b + 3}")
                p.e(f"buffer_store_dwordx4 {vr(d, 4)}, v{vLin}, {srd(sWS)}, s{sT0 + u2} offen offset:{qt * 1024}")
        p.end("epic")

    def code_prefetch(self, nbytes):
        p = self.p
        p.e(f"s_getpc_b64 s[{sTRP}:{sTRP + 1}]")
        p.e(f"v_lshlrev_b32 v{vM}, 7, v0")
        p.e(f"s_lshl_b32 s{sT0}, s{sW}, 13")
        p.e(f"v_add_u32 v{vM}, s{sT0}, v{vM}")
        n = (nbytes + 32767) // 32768
        for k in range(n):
            p.e(f"global_load_dword v{vM + 1 + k}, v{vM}, s[{sTRP}:{sTRP + 1}]")
            if k + 1 < n:
                p.e(f"v_add_u32 v{vM}, 32768, v{vM}")
        return n

    def kernel1(self):
        p = self.p
        self.suffix = "1"
        self.rares = []
        p.raw(f".globl {KN}\n.p2align 8\n.type {KN},@function")
        p.label(KN)
        self.load_args()
        if self.trace:
            p.e(f"s_mov_b32 s{sTR}, 8")
        self.stamp()
        self.setup_addr()
        self.set_head(0)
        self.qproj_setup()
        for c in range(3):
            self.dma_chunk(c)
        self.kv_base(sKVG)
        p.e(f"s_lshl_b32 s{sMK}, s{sW}, 12")
        p.e(f"s_add_u32 s{sMV}, s{sMK}, {LDS_V}")
        if LDS_K:
            p.e(f"s_add_u32 s{sMK}, s{sMK}, {LDS_K}")
        self.dma_kv()
        self.wo_prep_issue()
        self.stamp()
        self.qproj([26, 19, 19, 7, 7, 7, 7, 0])
        self.stamp()
        self.wo_prep_finish()
        self.stamp()
        self.attention(0, False)
        sBo, sHo = 70, 71
        p.e(f"s_sub_u32 s{sBo}, s{sB}, 8")
        p.e(f"s_mov_b32 s{sHo}, s{sH}")
        self.epilogue(sBo, sHo)
        self.stamp()
        p.e("s_barrier")
        self.qproj_setup()
        for c in range(3):
            self.dma_chunk(c)
        self.qproj([14, 7, 7, 7, 7, 7, 7, 0])
        self.stamp()
        self.attention(1, True)
        self.epilogue(sB, sH)
        self.stamp()
        self.trace_dump()
        p.label("L_end1")
        p.e("s_endpgm")
        for rare, back in self.rares:
            self.rare(rare, back)

    def outproj_tile(self, rnd, sPD=10):
        p = self.p
        sO, sWp = 72, 73
        p.e(f"s_and_b32 s{sT0}, s2, 7")
        p.e(f"s_lshr_b32 s{sT1}, s2, 3")
        p.e(f"s_lshr_b32 s{sT2}, s{sT0}, 1")
        p.e(f"s_lshl_b32 s{sT2}, s{sT2}, 1")
        p.e(f"s_lshr_b32 s{sT3}, s{sT1}, 4")
        p.e(f"s_add_u32 s{sB}, s{sT2}, s{sT3}")
        if rnd:
            p.e(f"s_add_u32 s{sB}, s{sB}, {8 * rnd}")
        p.e(f"s_lshr_b32 s{sI}, s{sT1}, 3")
        p.e(f"s_and_b32 s{sI}, s{sI}, 1")
        p.e(f"s_and_b32 s{sT0}, s{sT0}, 1")
        p.e(f"s_lshl_b32 s{sT0}, s{sT0}, 3")
        p.e(f"s_and_b32 s{sT1}, s{sT1}, 7")
        p.e(f"s_add_u32 s{sH}, s{sT0}, s{sT1}")
        p.e(f"s_lshl_b32 s{sT0}, s{sB}, 1")
        p.e(f"s_add_u32 s{sT0}, s{sT0}, s{sI}")
        p.e(f"s_lshl_b32 s{sT0}, s{sT0}, 7")
        p.e(f"s_lshl_b32 s{sT1}, s{sW}, 5")
        p.e(f"s_add_u32 s{sT0}, s{sT0}, s{sT1}")
        p.e(f"s_mul_i32 s{sO}, s{sT0}, 3072")
        if WS_O:
            p.e(f"s_add_u32 s{sO}, s{sO}, {WS_O}")
        p.e(f"s_lshl_b32 s{sT0}, s{sH}, 7")
        p.e(f"s_add_u32 s{sT0}, s{sT0}, s{sT1}")
        p.e(f"s_lshl_b32 s{sT0}, s{sT0}, 11")
        p.e(f"s_add_u32 s{sWp}, s{sT0}, {WS_WOP}")
        PD = sPD
        acc0 = 8
        buf0 = 32
        assert buf0 + PD * 20 <= 256

        def st(k):
            return buf0 + (k % PD) * 20

        def issue(k):
            b = st(k)
            for qt in range(3):
                p.e(f"buffer_load_dwordx4 {vr(b + 4 * qt, 4)}, v{vLin2}, {srd(sWS)}, s{sO} offen offset:{qt * 1024}")
            for c2 in range(2):
                p.e(f"buffer_load_dwordx4 {vr(b + 12 + 4 * c2, 4)}, v{vLin2}, {srd(sWS)}, s{sWp} offen offset:{c2 * 1024}")
            p.e(f"s_add_u32 s{sO}, s{sO}, 3072")
            p.e(f"s_add_u32 s{sWp}, s{sWp}, 2048")
        vLin2 = 2
        p.e("v_lshlrev_b32 v2, 4, v0")
        for k in range(PD):
            issue(k)
        for k in range(32):
            left = min(PD - 1, 31 - k)
            p.e(f"s_waitcnt vmcnt({left * 5})")
            b = st(k)
            for c2 in range(2):
                for qt in range(3):
                    acc = vr(acc0 + (c2 * 3 + qt) * 4, 4)
                    p.e(f"{MF} {acc}, {vr(b + 12 + 4 * c2, 4)}, {vr(b + 4 * qt, 4)}, {'0' if k == 0 else acc}")
            if k + PD < 32:
                issue(k + PD)
        p.e(f"s_mul_i32 s{sT0}, s{sW}, 6144")
        p.e(f"v_add_u32 v3, s{sT0}, v2")
        p.e("s_barrier")
        for c2 in range(2):
            for qt in range(3):
                p.e(f"ds_write_b128 v3, {vr(acc0 + (c2 * 3 + qt) * 4, 4)} offset:{(c2 * 3 + qt) * 1024}")
        p.e("s_waitcnt lgkmcnt(0)")
        p.e("s_barrier")
        skip = self.L("L_skip")
        p.e(f"s_cmp_eq_u32 s{sW}, 3")
        p.e(f"s_cbranch_scc1 {skip}")
        p.e(f"s_lshl_b32 s{sT0}, s{sW}, 10")
        p.e(f"v_add_u32 v3, s{sT0}, v2")
        p.begin()
        for c2 in range(2):
            for ww in range(4):
                p.e(f"ds_read_b128 {vr(32 + (c2 * 4 + ww) * 4, 4)}, v3 offset:{ww * 6144 + c2 * 3072}")
        for c2 in range(2):
            b = 32 + c2 * 16
            for r in range(4):
                p.e(f"v_add_f32 v{b + r}, v{b + r}, v{b + 4 + r}")
                p.e(f"v_add_f32 v{b + 8 + r}, v{b + 8 + r}, v{b + 12 + r}")
                p.e(f"v_add_f32 v{b + r}, v{b + r}, v{b + 8 + r}")
        p.e("v_cvt_pk_bf16_f32 v64, v32, v33")
        p.e("v_cvt_pk_bf16_f32 v65, v34, v35")
        p.e("v_cvt_pk_bf16_f32 v66, v48, v49")
        p.e("v_cvt_pk_bf16_f32 v67, v50, v51")
        p.e("v_and_b32 v4, 15, v0")
        p.e("v_lshrrev_b32 v5, 4, v0")
        p.e("v_lshlrev_b32 v5, 4, v5")
        p.e("v_lshl_add_u32 v4, v4, 10, v5")
        p.e(f"s_mul_i32 s{sT0}, s{sB}, 96")
        p.e(f"s_mul_i32 s{sT1}, s{sI}, 48")
        p.e(f"s_add_u32 s{sT0}, s{sT0}, s{sT1}")
        p.e(f"s_lshl_b32 s{sT1}, s{sW}, 4")
        p.e(f"s_add_u32 s{sT0}, s{sT0}, s{sT1}")
        p.e(f"s_lshl_b32 s{sT0}, s{sT0}, 10")
        p.e(f"s_lshl_b32 s{sT1}, s{sH}, 6")
        p.e(f"s_add_u32 s{sT0}, s{sT0}, s{sT1}")
        p.e(f"buffer_store_dwordx4 v[64:67], v4, {srd(sOUT)}, s{sT0} offen")
        p.end("opfin")
        p.label(skip)

    def kernel2(self):
        p = self.p
        self.suffix = "2"
        p.raw(f".globl {KN2}\n.p2align 8\n.type {KN2},@function")
        p.label(KN2)
        self.load_args()
        self.outproj_tile(0)
        self.outproj_tile(1)
        p.label("L_end2")
        p.e("s_endpgm")


THRESH_LIT = "0x41000000"


def desc(name, vgpr, accum, sgpr=96):
    return f""".amdhsa_kernel {name}
  .amdhsa_next_free_vgpr {vgpr}
  .amdhsa_next_free_sgpr {sgpr}
  .amdhsa_accum_offset {accum}
  .amdhsa_group_segment_fixed_size 0
  .amdhsa_kernarg_size 64
  .amdhsa_user_sgpr_count 2
  .amdhsa_user_sgpr_kernarg_segment_ptr 1
  .amdhsa_system_sgpr_workgroup_id_x 1
  .amdhsa_float_denorm_mode_32 3
.end_amdhsa_kernel"""


def build(trace=False, nt="nt"):
    g = Gen(trace=trace, nt=nt)
    hdr = f"""; MHA block: Q projection + attention (kernel 1), output projection (kernel 2)
; @launch kernel={KN} grid=(256,1,1) block=(256,1,1) lds={LDS_TOTAL}
; @launch kernel={KN2} grid=(256,1,1) block=(256,1,1) lds=32768
.amdgcn_target "amdgcn-amd-amdhsa--gfx950"
.text"""
    g.p.raw(hdr)
    g.kernel1()
    g.kernel2()
    w, n = g.p.finalize()
    txt = g.p.text()
    txt += '.section .rodata,"a"\n.p2align 6\n' + desc(KN, 512, 256) + "\n.p2align 6\n" + desc(KN2, 256, 256) + "\n"
    return txt, g, w, n


if __name__ == "__main__":
    import argparse
    ap = argparse.ArgumentParser()
    ap.add_argument("-o", default="standalone__mha_block_cached__near_ridge.s")
    ap.add_argument("--trace", action="store_true")
    a = ap.parse_args()
    txt, g, w, n = build(trace=a.trace)
    open(a.o, "w").write(txt)
    print("waits inserted", w, "nop states", n, "lines", txt.count("\n"))
    for e in g.p.est:
        print(e)
```

```python
import re

REG_RE = re.compile(r'^(-|\|)?(abs\()?([vas])(\d+|\[(\d+):(\d+)\])\)?\|?$')


def expand(tok):
    t = tok.strip()
    if t in ('vcc', 'exec'):
        return [t]
    if t in ('vcc_lo', 'vcc_hi'):
        return ['vcc']
    if t in ('exec_lo', 'exec_hi'):
        return ['exec']
    if t in ('m0', 'scc'):
        return [t]
    m = REG_RE.match(t)
    if not m:
        return []
    f = m.group(3)
    if m.group(5) is not None:
        return [f"{f}{i}" for i in range(int(m.group(5)), int(m.group(6)) + 1)]
    return [f"{f}{int(m.group(4))}"]


TRANS = ('v_exp_f32', 'v_log_f32', 'v_rcp_f32', 'v_rsq_f32', 'v_sqrt_f32', 'v_sin_f32', 'v_cos_f32', 'v_rcp_iflag_f32')
SALU_NO_SCC = ('s_mov_b32', 's_mov_b64', 's_mul_i32', 's_mul_hi_u32', 's_movk_i32', 's_getreg_b32', 's_getpc_b64',
               's_cselect_b32', 's_cselect_b64', 's_setreg_b32', 's_sext_i32_i16', 's_bitset1_b32', 's_bitset0_b32')


class I:
    __slots__ = ('text', 'op', 'ops', 'defs', 'uses', 'kind', 'pin', 'passes', 'srcc', 'srcab', 'target', 'mods',
                 'wide_store', 'note', 'prio', 'sdefs_valu')

    def __init__(self, text, mem_r=(), mem_w=(), pin=False, prio=0):
        self.text = text.strip()
        self.pin = pin
        self.prio = prio
        self.passes = 0
        self.srcc = []
        self.srcab = []
        self.target = None
        self.wide_store = []
        self.note = None
        t = self.text.split(';')[0].strip()
        if t.endswith(':'):
            self.op = 'label'
            self.target = t[:-1]
            self.kind = 'label'
            self.defs = []
            self.uses = []
            self.ops = []
            self.mods = []
            self.pin = True
            return
        sp = t.split(None, 1)
        op = sp[0]
        for suf in ('_e32', '_e64', '_dpp', '_sdwa'):
            if op.endswith(suf):
                op = op[:-len(suf)]
        self.op = op
        rest = sp[1] if len(sp) > 1 else ''
        parts = [p.strip() for p in rest.split(',')] if rest else []
        ops = []
        mods = []
        for k, p in enumerate(parts):
            ws = p.split()
            if not ws:
                continue
            ops.append(ws[0])
            mods += ws[1:]
        self.ops = ops
        self.mods = mods
        d, u = [], []
        E = expand
        k = None
        if op.startswith('v_mfma'):
            k = 'mfma'
            d = E(ops[0])
            self.srcab = E(ops[1]) + E(ops[2])
            self.srcc = E(ops[3])
            u = self.srcab + self.srcc
            if '32x32x16' in op or '32x32x8' in op:
                self.passes = 8
            elif '16x16x32' in op or '16x16x16' in op:
                self.passes = 4
            else:
                raise ValueError(op)
        elif op.startswith('v_cmpx'):
            raise ValueError('avoid v_cmpx')
        elif op.startswith('v_cmp'):
            k = 'valu'
            d = E(ops[0])
            for o in ops[1:]:
                u += E(o)
        elif op in ('v_readfirstlane_b32', 'v_readlane_b32'):
            k = 'valu'
            d = E(ops[0])
            for o in ops[1:]:
                u += E(o)
        elif op == 'v_writelane_b32':
            k = 'valu'
            d = E(ops[0])
            u = E(ops[0])
            for o in ops[1:]:
                u += E(o)
        elif op in ('v_permlane16_swap_b32', 'v_permlane32_swap_b32'):
            k = 'valu'
            d = E(ops[0]) + E(ops[1])
            u = list(d)
        elif op in ('v_fmac_f32', 'v_pk_fmac_f16', 'v_mac_f32', 'v_dot2c_f32_bf16'):
            k = 'valu'
            d = E(ops[0])
            u = E(ops[0])
            for o in ops[1:]:
                u += E(o)
        elif op == 'v_cndmask_b32':
            k = 'valu'
            d = E(ops[0])
            for o in ops[1:]:
                u += E(o)
            if len(ops) == 3:
                u.append('vcc')
        elif op in ('v_add_co_u32', 'v_sub_co_u32', 'v_subrev_co_u32'):
            k = 'valu'
            d = E(ops[0]) + E(ops[1])
            for o in ops[2:]:
                u += E(o)
        elif op in ('v_addc_co_u32', 'v_subb_co_u32'):
            k = 'valu'
            d = E(ops[0]) + E(ops[1])
            for o in ops[2:]:
                u += E(o)
        elif op == 'v_nop':
            k = 'valu'
        elif op.startswith('v_'):
            k = 'trans' if op in TRANS else 'valu'
            d = E(ops[0])
            for o in ops[1:]:
                u += E(o)
            if 'dpp' in self.text.split()[0] or any(m.startswith(('row_', 'quad_perm', 'wave_', 'row_bcast')) for m in mods):
                u += E(ops[0])
        elif op.startswith('ds_read') or op.startswith('ds_bpermute') or op.startswith('ds_swizzle') or op.startswith('ds_permute'):
            k = 'dsr'
            d = E(ops[0])
            for o in ops[1:]:
                u += E(o)
        elif op.startswith('ds_add_rtn') or op.startswith('ds_inc_rtn'):
            k = 'dsr'
            d = E(ops[0])
            for o in ops[1:]:
                u += E(o)
        elif op.startswith('ds_write') or op.startswith('ds_add') or op.startswith('ds_max') or op.startswith('ds_or'):
            k = 'dsw'
            for o in ops:
                u += E(o)
        elif op.startswith('buffer_load'):
            if 'lds' in mods:
                k = 'dma'
                for o in ops:
                    u += E(o)
                u.append('m0')
            else:
                k = 'vload'
                d = E(ops[0])
                for o in ops[1:]:
                    u += E(o)
        elif op.startswith('buffer_store'):
            k = 'vstore'
            for o in ops:
                u += E(o)
            if op.endswith(('x3', 'x4')):
                self.wide_store = E(ops[0])
        elif op.startswith('buffer_atomic') or op.startswith('global_atomic'):
            k = 'vstore'
            if op.startswith('buffer_atomic'):
                for o in ops:
                    u += E(o)
                if 'sc0' in mods:
                    d = E(ops[0])
                    k = 'vload'
            else:
                if 'sc0' in mods:
                    d = E(ops[0])
                    k = 'vload'
                    for o in ops[1:]:
                        u += E(o)
                else:
                    for o in ops:
                        u += E(o)
        elif op.startswith('global_load_lds'):
            k = 'dma'
            for o in ops:
                u += E(o)
            u.append('m0')
        elif op.startswith('global_load'):
            k = 'vload'
            d = E(ops[0])
            for o in ops[1:]:
                u += E(o)
        elif op.startswith('global_store'):
            k = 'vstore'
            for o in ops:
                u += E(o)
            if op.endswith(('x3', 'x4')):
                self.wide_store = E(ops[1])
        elif op in ('buffer_wbl2', 'buffer_inv'):
            k = 'vstore'
            self.pin = True
        elif op.startswith('s_load') or op.startswith('s_buffer_load'):
            k = 'smem'
            d = E(ops[0])
            for o in ops[1:]:
                u += E(o)
            self.pin = True
        elif op in ('s_memtime', 's_memrealtime'):
            k = 'smem'
            d = E(ops[0])
            self.pin = True
        elif op == 's_waitcnt':
            k = 'wait'
            self.pin = True
        elif op == 's_barrier':
            k = 'barrier'
            self.pin = True
        elif op == 's_nop':
            k = 'nop'
            self.pin = True
        elif op in ('s_sleep', 's_setprio'):
            k = 'salu'
            self.pin = True
        elif op == 's_endpgm':
            k = 'end'
            self.pin = True
        elif op == 's_branch':
            k = 'branch'
            self.target = ops[0]
            self.pin = True
        elif op.startswith('s_cbranch'):
            k = 'cbranch'
            self.target = ops[0]
            self.pin = True
            if 'scc' in op:
                u = ['scc']
            elif 'vcc' in op:
                u = ['vcc']
            elif 'exec' in op:
                u = ['exec']
        elif op.startswith('s_cmp') or op.startswith('s_bitcmp'):
            k = 'salu'
            d = ['scc']
            for o in ops:
                u += E(o)
        elif op.startswith('s_') and 'saveexec' in op:
            k = 'salu'
            d = E(ops[0]) + ['exec', 'scc']
            u = ['exec']
            for o in ops[1:]:
                u += E(o)
            self.pin = True
        elif op.startswith('s_'):
            k = 'salu'
            d = E(ops[0])
            for o in ops[1:]:
                u += E(o)
            if op in ('s_addk_i32', 's_mulk_i32', 's_bitset1_b32', 's_bitset0_b32'):
                u += E(ops[0])
            if op not in SALU_NO_SCC and op != 's_mulk_i32':
                d = d + ['scc']
            if op in ('s_addc_u32', 's_subb_u32', 's_cselect_b32', 's_cselect_b64', 's_cmov_b32'):
                u.append('scc')
            if 'exec' in d:
                self.pin = True
        else:
            raise ValueError('unknown op: ' + self.text)
        self.kind = k
        self.defs = list(d) + ['@' + m for m in mem_w]
        self.uses = list(u) + ['@' + m for m in mem_r]
        if k in ('dma', 'vload', 'vstore'):
            self.defs.append('@vmq')
            self.uses.append('@vmq')

    def __repr__(self):
        return self.text


VMEM_GAP = 64


def issue_cost(i):
    k = i.kind
    if k == 'mfma':
        return 8
    if k == 'trans':
        return 8
    if k in ('dma', 'vload', 'vstore'):
        return 8
    if k in ('label',):
        return 0
    return 4


def latency(p, c, reg):
    if reg.startswith('@'):
        return issue_cost(p)
    if p.kind == 'mfma':
        if c.kind == 'mfma' and reg in c.srcc and p.defs[:len(c.srcc)] == c.srcc:
            return p.passes * 4
        return p.passes * 4 + 24
    if p.kind == 'dsr':
        return 96
    if p.kind == 'trans':
        return 12
    if p.kind == 'valu' and c.kind == 'mfma':
        return 12
    if p.kind == 'vload':
        return 600
    return issue_cost(p)


def schedule(insts, verbose=False, mode='order'):
    n = len(insts)
    if n <= 1:
        return list(insts)
    preds = [[] for _ in range(n)]
    last_def = {}
    last_uses = {}
    for k, ins in enumerate(insts):
        for r in ins.uses:
            if r in last_def:
                p = last_def[r]
                preds[k].append((p, latency(insts[p], ins, r)))
        for r in ins.defs:
            if r in last_def:
                p = last_def[r]
                lat = issue_cost(insts[p])
                if insts[p].kind == 'mfma' and ins.kind != 'mfma':
                    lat = insts[p].passes * 4 + 24
                if insts[p].kind == 'dsr' and not r.startswith('@'):
                    lat = 96
                preds[k].append((p, lat))
            for p in last_uses.get(r, []):
                if p != k:
                    lat = issue_cost(insts[p])
                    if insts[p].kind == 'mfma' and r in insts[p].srcc and ins.kind == 'valu':
                        lat = insts[p].passes * 4
                    preds[k].append((p, lat))
        for r in ins.uses:
            last_uses.setdefault(r, []).append(k)
        for r in ins.defs:
            last_def[r] = k
            last_uses[r] = []
    succs = [[] for _ in range(n)]
    for k in range(n):
        for p, lat in preds[k]:
            succs[p].append((k, lat))
    cp = [0] * n
    for k in range(n - 1, -1, -1):
        best = 0
        for s, lat in succs[k]:
            best = max(best, lat + cp[s])
        cp[k] = best + (0 if succs[k] else issue_cost(insts[k]))
    npred = [len(set(p for p, _ in preds[k])) for k in range(n)]
    ready_t = [0] * n
    done = [False] * n
    avail = [k for k in range(n) if npred[k] == 0]
    now = 0
    mfma_free = 0
    vmem_free = 0
    out = []
    succ_sets = [set(s for s, _ in succs[k]) for k in range(n)]
    while avail:
        def start_time(k):
            t = max(now, ready_t[k])
            if insts[k].kind == 'mfma':
                t = max(t, mfma_free)
            if insts[k].kind in ('dma', 'vload', 'vstore'):
                t = max(t, vmem_free)
            return t
        cand = [k for k in avail if start_time(k) <= now]
        if cand:
            mf = [k for k in cand if insts[k].kind == 'mfma']
            hi = [k for k in cand if insts[k].prio > 0]
            if hi:
                k = max(hi, key=lambda x: (insts[x].prio, -x))
            elif mf:
                k = max(mf, key=lambda x: (cp[x], -x) if mode == 'cp' else (0, -x))
            else:
                k = max(cand, key=lambda x: (insts[x].prio, cp[x], -x) if mode == 'cp' else (insts[x].prio, 0, -x))
        else:
            k = min(avail, key=lambda x: (start_time(x), -insts[x].prio, -cp[x], x))
        t = start_time(k)
        ins = insts[k]
        out.append(ins)
        avail.remove(k)
        done[k] = True
        now = t + issue_cost(ins)
        if ins.kind == 'mfma':
            mfma_free = t + ins.passes * 4
        if ins.kind in ('dma', 'vload', 'vstore'):
            vmem_free = t + VMEM_GAP
        for s, lat in succs[k]:
            ready_t[s] = max(ready_t[s], t + lat)
        for s in succ_sets[k]:
            npred[s] -= 1
            if npred[s] == 0:
                avail.append(s)
    assert len(out) == n
    if verbose:
        print(f"; region of {n} instrs scheduled, est {now} cycles")
    return out, now


class Prog:
    def __init__(self):
        self.items = []
        self.cur = None
        self.est = []

    def raw(self, s):
        assert self.cur is None
        self.items.append(s)

    def e(self, text, **kw):
        ins = I(text, **kw)
        if self.cur is not None:
            assert not ins.pin, f"pinned instr inside a scheduled region: {text}"
            self.cur.append(ins)
        else:
            self.items.append(ins)
        return ins

    def label(self, name):
        self.e(name + ':')

    def begin(self):
        assert self.cur is None
        self.cur = []

    def end(self, name='', sched=True, mode='order'):
        r = self.cur
        self.cur = None
        if sched and len(r) > 1:
            r, est = schedule(r, mode=mode)
            self.est.append((name, len(r), est))
        self.items += r

    def _cfg(self):
        ins = self.items
        n = len(ins)
        labels = {}
        for k, i in enumerate(ins):
            if isinstance(i, I) and i.kind == 'label':
                labels[i.target] = k
        preds = [[] for _ in range(n)]
        prev = None
        for k, i in enumerate(ins):
            if not isinstance(i, I):
                continue
            if prev is not None and ins[prev].kind not in ('branch', 'end'):
                preds[k].append(prev)
            if i.kind in ('branch', 'cbranch'):
                preds[labels[i.target]].append(k)
            prev = k
        return preds

    @staticmethod
    def states(i):
        if i.kind == 'label':
            return 0
        if i.kind == 'nop':
            return int(i.ops[0], 0) + 1
        return 1

    @staticmethod
    def hazard(p, c):
        need = 0
        pd = set(r for r in p.defs if not r.startswith('@'))
        cu = set(r for r in c.uses if not r.startswith('@'))
        cd = set(r for r in c.defs if not r.startswith('@'))
        isv = lambda r: r[0] in 'va' and r not in ('vcc',)
        iss = lambda r: (r[0] == 's' and r != 'scc') or r == 'vcc'
        valu_p = p.kind in ('valu', 'trans')
        valu_c = c.kind in ('valu', 'trans')
        if valu_p:
            vd = set(r for r in pd if isv(r))
            sd = set(r for r in pd if iss(r))
            if c.kind == 'mfma' and vd & cu:
                need = max(need, 2)
            if c.op in ('v_readfirstlane_b32', 'v_readlane_b32') and vd & cu:
                need = max(need, 1)
            if c.op.startswith('v_permlane') and vd & cu:
                need = max(need, 2)
            if valu_c and ('dpp' in c.text.split()[0]) and vd & cu:
                need = max(need, 2)
            if p.kind == 'trans' and valu_c and vd & cu:
                need = max(need, 1)
            if p.kind == 'trans' and c.kind in ('dsw', 'dsr', 'vstore', 'vload', 'dma') and vd & cu:
                need = max(need, 1)
            if sd:
                if c.op in ('v_readlane_b32', 'v_writelane_b32') and sd & set(expand(c.ops[-1])):
                    need = max(need, 4)
                if valu_c and sd & cu:
                    need = max(need, 2)
                if c.kind in ('dma', 'vload', 'vstore') and sd & cu:
                    need = max(need, 5)
                if c.kind in ('salu', 'smem', 'cbranch') and sd & cu:
                    need = max(need, 4)
            if 'exec' in pd:
                raise ValueError('valu exec write')
        if p.kind == 'salu':
            if 'm0' in pd and (c.kind == 'dma' or 'm0' in cu):
                need = max(need, 1)
            if 'exec' in pd and c.kind == 'mfma':
                need = max(need, 4)
            if 'exec' in pd and valu_c and 'dpp' in c.text.split()[0]:
                need = max(need, 5)
        if p.kind == 'mfma':
            P = p.passes
            full = {2: 5, 4: 8, 8: 12, 16: 20}[P]
            if c.kind == 'mfma':
                if pd & set(c.srcab):
                    need = max(need, full)
                ov = pd & set(c.srcc)
                if ov:
                    if list(p.defs) == list(c.srcc) and p.passes == c.passes:
                        pass
                    else:
                        need = max(need, {2: 4, 4: 6, 8: 10, 16: 18}[P])
                if (pd & cd) and not ov:
                    need = max(need, {2: 4, 4: 6, 8: 10, 16: 18}[P])
            else:
                if pd & (cu | cd):
                    need = max(need, full)
                if valu_c and (set(p.srcc) & cd):
                    need = max(need, {2: 1, 4: 3, 8: 7, 16: 15}[P])
                if c.kind in ('dsr', 'vload') and (set(p.srcc) & cd):
                    need = max(need, {2: 1, 4: 3, 8: 7, 16: 15}[P])
        if p.wide_store:
            if set(p.wide_store) & cd:
                need = max(need, 2)
        return need

    def fix_hazards(self):
        MAXD = 21
        total = 0
        changed = True
        while changed:
            changed = False
            preds = self._cfg()
            k = 0
            while k < len(self.items):
                ins = self.items
                c = ins[k]
                if not isinstance(c, I) or c.kind in ('label', 'nop', 'wait', 'barrier', 'end', 'branch'):
                    k += 1
                    continue
                worst = 0
                stack = [(p, 0) for p in preds[k]]
                seen = {}
                while stack:
                    p, dist = stack.pop()
                    if dist >= MAXD:
                        continue
                    if p in seen and seen[p] <= dist:
                        continue
                    seen[p] = dist
                    pi = ins[p]
                    if pi.kind not in ('label', 'nop', 'wait', 'barrier'):
                        h = self.hazard(pi, c)
                        if h - dist > worst:
                            worst = h - dist
                    nd = dist + self.states(pi)
                    for q in preds[p]:
                        stack.append((q, nd))
                if worst > 0:
                    changed = True
                    w = worst
                    total += w
                    while w > 0:
                        m = min(w, 16)
                        self.items.insert(k, I(f"s_nop {m - 1}"))
                        k += 1
                        w -= m
                    preds = self._cfg()
                k += 1
        return total

    def insert_lgkm_waits(self):
        nins = 0
        asyncregs = set()
        for i in self.items:
            if isinstance(i, I) and i.kind in ('dsr', 'smem'):
                asyncregs |= set(r for r in i.defs if not r.startswith('@'))
        changed = True
        while changed:
            changed = False
            preds = self._cfg()
            k = 0
            while k < len(self.items):
                ins = self.items
                c = ins[k]
                if not isinstance(c, I) or c.kind in ('label', 'nop', 'wait', 'end', 'branch'):
                    k += 1
                    continue
                regs = frozenset(r for r in (c.uses + c.defs) if r in asyncregs)
                if not regs:
                    k += 1
                    continue
                best = None
                stack = [(p, 0, None, regs) for p in preds[k]]
                seen = set()
                while stack:
                    p, cnt, cover, rem = stack.pop()
                    key = (p, min(cnt, 17), cover if cover is None else min(cover, 40), rem)
                    if key in seen:
                        continue
                    seen.add(key)
                    pi = ins[p]
                    ncnt = cnt
                    ncover = cover
                    nrem = rem
                    if pi.kind == 'wait':
                        m = re.search(r'lgkmcnt\((\d+)\)', pi.text)
                        if m:
                            nwait = int(m.group(1))
                            if nwait == 0:
                                continue
                            x = cnt + nwait
                            if ncover is None or x < ncover:
                                ncover = x
                    else:
                        hit = rem & set(pi.defs)
                        if hit:
                            if pi.kind == 'dsr':
                                if cover is None or cnt < cover:
                                    nw = min(cnt, 15)
                                    if best is None or nw < best:
                                        best = nw
                            elif pi.kind == 'smem':
                                raise ValueError(f"smem result {pi.text} consumed by {c.text} without lgkmcnt(0)")
                            nrem = rem - hit
                            if not nrem:
                                continue
                        if pi.kind in ('dsr', 'dsw'):
                            ncnt = cnt + 1
                        elif pi.kind == 'smem':
                            ncnt = cnt + 2
                    if ncover is not None and ncnt >= ncover:
                        continue
                    for q in preds[p]:
                        stack.append((q, min(ncnt, 41), ncover, nrem))
                if best is not None:
                    self.items.insert(k, I(f"s_waitcnt lgkmcnt({best})"))
                    nins += 1
                    changed = True
                    preds = self._cfg()
                    k += 1
                k += 1
        return nins

    def finalize(self):
        a = self.insert_lgkm_waits()
        b = self.fix_hazards()
        return a, b

    def text(self):
        out = []
        for i in self.items:
            if isinstance(i, I):
                out.append(i.text if i.kind == 'label' else '    ' + i.text)
            else:
                out.append(i)
        return '\n'.join(out) + '\n'
```

```python
import sys
import struct
import math
sys.path.insert(0, "gen")
from sched import Prog, I

KN = "standalone__mha_block_cached__near_ridge_kernel"

XB = 16 * 96 * 512 * 2
KVB = 16 * 32 * 1024 * 128 * 2
WQB = 512 * 4096 * 2
WOB = 4096 * 512 * 2
OUTB = 16 * 96 * 512 * 2
WSB = 536870912
WS_O = 0
WS_WOP = 0x1000000
WS_FLAG = 0x1800000
WS_TRACE = 0x2000000
QSCALE = struct.unpack('<I', struct.pack('<f', math.log2(math.e) / math.sqrt(128.0)))[0]
THRESH_LIT = "0x41000000"

SLOT = 0x8000
LDS_AUX = 0x18000
LDS_TOTAL = 0x28000
CH64 = 28 * 1024
QCH = [0x10000, 0x18000, 0x1F000]
Q1X = 0x20000
Q2X = 0x0000
SIDE = [0x18000, 0x1C000]
WOST = 0x20000
OEX = 0x18000
RED = 0x18000

sX, sK, sV, sWQ, sWO, sWS, sOUT, sDBG = 20, 24, 28, 32, 36, 40, 44, 96
sW, sI, sJ, sH, sB, sCNT, sKVG, sMK, sNEXT = 48, 49, 50, 51, 52, 53, 54, 55, 56
sT0, sT1, sT2, sT3 = 57, 58, 59, 60
sXF = 61
sWQG = 64
sRS = 65
sTR = 66
sDL = 67
sTRP = 68
sBo, sHo = 70, 71
sO, sWp = 72, 73
sC, sCX, sCW = 74, 75, 76
sSX0, sSX1, sSW, sSM = 77, 78, 79, 80
sSR = 81
sB2 = 82
NSGPR = 100


def srd(n):
    return f"s[{n}:{n + 3}]"


def vr(n, k=1):
    return f"v{n}" if k == 1 else f"v[{n}:{n + k - 1}]"


def ar(n, k=1):
    return f"a{n}" if k == 1 else f"a[{n}:{n + k - 1}]"


vTRC = 1
vKd, vVd, vKr, vVr, vWd, vXd, vLin, vWr = 2, 6, 8, 12, 20, 22, 23, 24
vT = 26
vS = 32
vNM = 56
vP = 68
vO = 80
vL = 176
vONE = 188
vM = 192
vR = 208
aQ, aK, aV, aX, aW = 0, 48, 80, 112, 160


def S(kt, qt): return vS + (kt * 3 + qt) * 4
def O(dt, qt): return vO + (dt * 3 + qt) * 4
def Qf(s, qt): return aQ + (s * 3 + qt) * 4
def Kf(kt, s): return aK + (kt * 4 + s) * 4
def Vf(dt): return aV + dt * 4


MF = "v_mfma_f32_16x16x32_bf16"


class Gen:
    def __init__(self, trace=False, nt="nt", fx="", fst="sc1", fld="sc1", hmap=8, side_q=True, pf=True, fine=False):
        self.p = Prog()
        self.trace = trace
        self.nt = nt
        self.fx = fx
        self.fst = fst
        self.fld = fld
        self.hmap = hmap
        self.side_q = side_q
        self.pf = pf
        self.fine = fine
        self.ntr = 0
        self.lab = 0
        self.rares = []
        self.fifo = []

    def L(self, s):
        self.lab += 1
        return f"{s}_{self.lab}"

    def vm(self, tag, text, **kw):
        self.fifo.append(tag)
        self.p.e(text, **kw)

    def wait(self, *tags):
        last = -1
        for k, t in enumerate(self.fifo):
            if t in tags:
                last = k
        assert last >= 0, tags
        n = len(self.fifo) - 1 - last
        assert n <= 63
        self.p.e(f"s_waitcnt vmcnt({n})")
        self.fifo = self.fifo[last + 1:]

    def stamp(self):
        if not self.trace:
            return
        p = self.p
        p.e(f"s_memrealtime s[{sTRP}:{sTRP + 1}]")
        p.e("s_waitcnt lgkmcnt(0)")
        p.e(f"v_writelane_b32 v{vTRC}, s{sTRP}, {self.ntr}")
        self.ntr += 1

    def stamp_dyn(self):
        if not self.trace:
            return
        p = self.p
        p.e(f"s_memrealtime s[{sTRP}:{sTRP + 1}]")
        p.e("s_waitcnt lgkmcnt(0)")
        p.e(f"s_mov_b32 m0, s{sTR}")
        p.e(f"v_writelane_b32 v{vTRC}, s{sTRP}, m0")
        p.e(f"s_add_u32 s{sTR}, s{sTR}, 1")

    def trace_dump(self):
        if not self.trace:
            return
        p = self.p
        p.e(f"s_lshl_b32 s{sT0}, s2, 2")
        p.e(f"s_add_u32 s{sT0}, s{sT0}, s{sW}")
        p.e(f"s_lshl_b32 s{sT0}, s{sT0}, 8")
        p.e(f"s_add_u32 s{sT0}, s{sT0}, {WS_TRACE}")
        p.e(f"v_lshlrev_b32 v{vT}, 2, v0")
        p.e(f"buffer_store_dword v{vTRC}, v{vT}, {srd(sWS)}, s{sT0} offen")

    def load_args(self):
        p = self.p
        p.e("s_cmp_ge_u32 s2, 256")
        p.e("s_cbranch_scc1 L_end")
        p.e("s_load_dwordx16 s[4:19], s[0:1], 0")
        p.e("v_lshrrev_b32 v1, 6, v0")
        p.e("v_and_b32 v0, 63, v0")
        p.e(f"v_readfirstlane_b32 s{sW}, v1")
        p.e(f"v_lshlrev_b32 v{vLin}, 4, v0")
        if self.pf:
            p.e(f"s_getpc_b64 s[{sTRP}:{sTRP + 1}]")
            p.label("L_pcref")
            p.e(f"v_lshlrev_b32 v{vM}, 7, v0")
            p.e(f"s_lshl_b32 s{sT0}, s{sW}, 14")
            p.e(f"v_add_u32 v{vM}, s{sT0}, v{vM}")
            p.e(f"v_add_u32 v{vM + 1}, 0x2000, v{vM}")
            p.e(f"v_min_u32 v{vM}, L_codeend-L_pcref-4, v{vM}")
            p.e(f"v_min_u32 v{vM + 1}, L_codeend-L_pcref-4, v{vM + 1}")
            self.vm('pf', f"global_load_dword v{vM + 2}, v{vM}, s[{sTRP}:{sTRP + 1}]")
            self.vm('pf', f"global_load_dword v{vM + 3}, v{vM + 1}, s[{sTRP}:{sTRP + 1}]")
        p.e(f"s_lshr_b32 s{sI}, s{sW}, 1")
        p.e(f"s_and_b32 s{sJ}, s{sW}, 1")
        p.e("s_waitcnt lgkmcnt(0)")
        for n, ptr, size in ((sX, 4, XB), (sWQ, 10, WQB), (sK, 6, KVB), (sV, 8, KVB), (sWO, 12, WOB), (sWS, 18, WSB),
                             (sOUT, 14, OUTB), (sDBG, 16, 256)):
            p.e(f"s_mov_b32 s{n}, s{ptr}")
            p.e(f"s_mov_b32 s{n + 1}, s{ptr + 1}")
            p.e(f"s_mov_b32 s{n + 2}, {size:#x}")
            p.e(f"s_mov_b32 s{n + 3}, 0x20000")

    def setup_dma_addr(self):
        p = self.p
        t0, t1, t2 = vT, vT + 1, vT + 2
        p.e(f"v_lshrrev_b32 v{t0}, 4, v0")
        p.e(f"v_and_b32 v{t1}, 15, v0")
        p.e(f"v_lshlrev_b32 v{t2}, 4, v{t0}")
        p.e(f"v_lshl_add_u32 v{vXd}, v{t1}, 10, v{t2}")
        p.e(f"v_lshlrev_b32 v{t2}, 1, v{t0}")
        p.e(f"v_xor_b32 v{t2}, v{t1}, v{t2}")
        p.e(f"v_lshlrev_b32 v{t2}, 4, v{t2}")
        p.e(f"v_lshl_add_u32 v{vWd}, v{t0}, 13, v{t2}")
        p.e(f"v_xor_b32 v{vWd + 1}, 0x80, v{vWd}")
        p.e(f"v_lshl_add_u32 v{vVd}, v{t0}, 8, v{t2}")
        p.e(f"v_xor_b32 v{vVd + 1}, 0x80, v{vVd}")
        p.e(f"v_xor_b32 v{t2}, v{t1}, v{t0}")
        p.e(f"v_lshlrev_b32 v{t2}, 4, v{t2}")
        p.e(f"v_lshl_add_u32 v{vKd}, v{t0}, 8, v{t2}")
        for ii in range(1, 4):
            p.e(f"v_xor_b32 v{vKd + ii}, {ii << 6}, v{vKd}")

    def setup_read_addr(self):
        p = self.p
        t0, t1, t2, t3 = vM + 4, vM + 5, vM + 6, vM + 7
        p.e(f"v_lshrrev_b32 v{t0}, 4, v0")
        p.e(f"v_and_b32 v{t1}, 15, v0")
        p.e(f"v_xor_b32 v{t2}, v{t0}, v{t1}")
        p.e(f"v_lshlrev_b32 v{t2}, 4, v{t2}")
        p.e(f"v_lshl_add_u32 v{t2}, v{t1}, 8, v{t2}")
        p.e(f"s_lshl_b32 s{sT3}, s{sJ}, 13")
        p.e(f"v_add_u32 v{vKr}, s{sT3}, v{t2}")
        for s in range(1, 4):
            p.e(f"v_xor_b32 v{vKr + s}, {s << 6}, v{vKr}")
        p.e(f"v_lshrrev_b32 v{t2}, 2, v0")
        p.e(f"v_and_b32 v{t3}, 7, v{t2}")
        p.e(f"v_lshlrev_b32 v{t3}, 5, v{t3}")
        p.e(f"v_lshl_add_u32 v{t2}, v{t2}, 8, v{t3}")
        p.e(f"v_and_b32 v{t3}, 3, v0")
        p.e(f"v_lshl_add_u32 v{t2}, v{t3}, 3, v{t2}")
        p.e(f"s_add_u32 s{sT3}, s{sT3}, 0x4000")
        p.e(f"s_lshl_b32 s{sT2}, s{sJ}, 7")
        p.e(f"v_xor_b32 v{vVr}, s{sT2}, v{t2}")
        p.e(f"v_add_u32 v{vVr}, s{sT3}, v{vVr}")
        for dt in range(1, 8):
            p.e(f"v_xor_b32 v{vVr + dt}, {dt << 5}, v{vVr}")
        p.e(f"s_lshl_b32 s{sT2}, s{sW}, 6")
        p.e(f"v_xor_b32 v{vWr}, s{sT2}, v{t2}")
        p.e(f"v_xor_b32 v{vWr + 1}, 0x20, v{vWr}")
        for k in range(4):
            p.e(f"v_mov_b32 v{vONE + k}, 0x3f803f80")

    def head_ids(self, dB, dH, rnd):
        p = self.p
        hm = self.hmap
        lg = hm.bit_length() - 1
        ngrp = 32 // hm
        lgg = ngrp.bit_length() - 1
        p.e(f"s_and_b32 s{sT0}, s2, 7")
        p.e(f"s_lshr_b32 s{sT1}, s2, 3")
        p.e(f"s_and_b32 s{sT2}, s{sT0}, {ngrp - 1}")
        p.e(f"s_lshl_b32 s{sT2}, s{sT2}, {lg}")
        p.e(f"s_and_b32 s{sT3}, s{sT1}, {hm - 1}")
        p.e(f"s_add_u32 s{dH}, s{sT2}, s{sT3}")
        p.e(f"s_lshr_b32 s{sT0}, s{sT0}, {lgg}")
        p.e(f"s_lshl_b32 s{sT0}, s{sT0}, {lgg}")
        p.e(f"s_lshr_b32 s{sT1}, s{sT1}, {lg}")
        p.e(f"s_add_u32 s{dB}, s{sT0}, s{sT1}")
        if rnd:
            p.e(f"s_add_u32 s{dB}, s{dB}, {8 * rnd}")

    def kv_base(self, dst, b, h):
        p = self.p
        p.e(f"s_lshl_b32 s{dst}, s{b}, 5")
        p.e(f"s_add_u32 s{dst}, s{dst}, s{h}")
        p.e(f"s_lshl_b32 s{dst}, s{dst}, 18")
        p.e(f"s_lshl_b32 s{sT0}, s{sW}, 12")
        p.e(f"s_add_u32 s{dst}, s{dst}, s{sT0}")

    def dma_kv(self, tag='kv'):
        p = self.p
        p.e(f"s_mov_b32 m0, s{sMK}")
        for ii in range(4):
            self.vm(tag, f"buffer_load_dwordx4 v{vKd + ii}, {srd(sK)}, s{sKVG} offen offset:{ii * 1024} {self.nt} lds")
        p.e(f"s_add_u32 m0, s{sMK}, 0x4000")
        for ii in range(4):
            self.vm(tag, f"buffer_load_dwordx4 v{vVd + (ii & 1)}, {srd(sV)}, s{sKVG} offen offset:{ii * 1024} {self.nt} lds")
        p.e(f"s_add_u32 s{sKVG}, s{sKVG}, 16384")
        p.e(f"s_add_u32 s{sMK}, s{sMK}, {SLOT}")
        p.e(f"s_cmp_ge_u32 s{sMK}, {3 * SLOT}")
        p.e(f"s_cselect_b32 s{sT3}, {3 * SLOT}, 0")
        p.e(f"s_sub_u32 s{sMK}, s{sMK}, s{sT3}")

    def qproj_setup(self):
        p = self.p
        p.e(f"s_mul_i32 s{sT0}, s{sB}, 98304")
        p.e(f"s_mul_i32 s{sT1}, s{sW}, 3")
        for n in range(3):
            p.e(f"s_add_u32 s{sT2}, s{sT1}, {n}")
            p.e(f"s_lshr_b32 s{sT3}, s{sT2}, 1")
            p.e(f"s_lshl_b32 s{sT3}, s{sT3}, 14")
            p.e(f"s_and_b32 s{sT2}, s{sT2}, 1")
            p.e(f"s_lshl_b32 s{sT2}, s{sT2}, 6")
            p.e(f"s_add_u32 s{sT3}, s{sT3}, s{sT2}")
            p.e(f"s_add_u32 s{sXF + n}, s{sT3}, s{sT0}")
        p.e(f"s_lshl_b32 s{sT0}, s{sI}, 5")
        p.e(f"s_lshl_b32 s{sT1}, s{sJ}, 2")
        p.e(f"s_add_u32 s{sT0}, s{sT0}, s{sT1}")
        p.e(f"s_lshl_b32 s{sT0}, s{sT0}, 13")
        p.e(f"s_lshl_b32 s{sT1}, s{sH}, 8")
        p.e(f"s_add_u32 s{sWQG}, s{sT0}, s{sT1}")
        p.e(f"s_mul_i32 s{sCX}, s{sW}, 3072")
        p.e(f"s_lshl_b32 s{sCW}, s{sW}, 12")

    def dma_chunk64(self, c):
        p = self.p
        base = QCH[c % 3]
        for n in range(3):
            p.e(f"s_add_u32 m0, s{sCX}, {base + n * 1024}")
            p.e(f"s_add_u32 s{sT1}, s{sXF + n}, {c * 128}")
            self.vm(f"c{c}", f"buffer_load_dwordx4 v{vXd}, {srd(sX)}, s{sT1} offen {self.fx} lds")
        for i4 in range(4):
            p.e(f"s_add_u32 m0, s{sCW}, {base + 12288 + i4 * 1024}")
            p.e(f"s_add_u32 s{sT1}, s{sWQG}, {(c * 64 + 8 * i4) * 8192}")
            self.vm(f"c{c}", f"buffer_load_dwordx4 v{vWd + (i4 & 1)}, {srd(sWQ)}, s{sT1} offen {self.fx} lds")

    @staticmethod
    def QA(base, dt2, qt6):
        return base + (dt2 * 6 + qt6) * 4

    def qproj_chunk64(self, c):
        p = self.p
        base = QCH[c % 3]
        vXr, vW0 = vT + 3, vT + 4
        p.e(f"v_add_u32 v{vXr}, {base}, v{vLin}")
        p.e(f"v_add_u32 v{vW0}, {base + 12288}, v{vWr}")
        p.e(f"v_add_u32 v{vW0 + 1}, {base + 12288}, v{vWr + 1}")
        for ks in range(2):
            for dt2 in range(2):
                a0 = aW + (ks * 2 + dt2) * 4
                off = ks * 8192
                p.e(f"ds_read_b64_tr_b16 {ar(a0, 2)}, v{vW0 + dt2} offset:{off}")
                p.e(f"ds_read_b64_tr_b16 {ar(a0 + 2, 2)}, v{vW0 + dt2} offset:{off + 4096}")
            for qt6 in range(6):
                fi = 2 * qt6 + ks
                p.e(f"ds_read_b128 {ar(aX + (ks * 6 + qt6) * 4, 4)}, v{vXr} offset:{fi * 1024}")
        for ks in range(2):
            for qt6 in range(6):
                for dt2 in range(2):
                    acc = vr(self.QA(vO, dt2, qt6), 4)
                    cin = "0" if (c == 0 and ks == 0) else acc
                    p.e(f"{MF} {acc}, {ar(aW + (ks * 2 + dt2) * 4, 4)}, {ar(aX + (ks * 6 + qt6) * 4, 4)}, {cin}")

    def q_write(self, accbase, ldsbase):
        p = self.p
        t0, t1, t2, t3 = vT, vT + 1, vT + 2, vT + 3
        p.e(f"v_lshrrev_b32 v{t0}, 4, v0")
        p.e(f"v_and_b32 v{t1}, 15, v0")
        p.e(f"v_lshrrev_b32 v{t2}, 1, v{t0}")
        p.e(f"s_lshl_b32 s{sT0}, s{sW}, 2")
        p.e(f"v_add_u32 v{t2}, s{sT0}, v{t2}")
        p.e(f"v_xor_b32 v{t2}, v{t2}, v{t1}")
        p.e(f"v_lshlrev_b32 v{t2}, 4, v{t2}")
        p.e(f"v_lshl_add_u32 v{t2}, v{t1}, 8, v{t2}")
        p.e(f"v_and_b32 v{t0}, 1, v{t0}")
        p.e(f"v_lshl_add_u32 v{t2}, v{t0}, 3, v{t2}")
        if ldsbase:
            p.e(f"v_add_u32 v{t2}, {ldsbase}, v{t2}")
        p.e(f"v_xor_b32 v{t3}, 0x20, v{t2}")
        p.e(f"s_mov_b32 s{sT1}, {QSCALE:#x}")
        for qt6 in range(6):
            for dt2 in range(2):
                q = self.QA(accbase, dt2, qt6)
                for r in range(4):
                    p.e(f"v_mul_f32 v{q + r}, s{sT1}, v{q + r}")
                p.e(f"v_cvt_pk_bf16_f32 v{q}, v{q}, v{q + 1}")
                p.e(f"v_cvt_pk_bf16_f32 v{q + 1}, v{q + 2}, v{q + 3}")
                p.e(f"ds_write_b64 v{t2 + dt2}, {vr(q, 2)} offset:{qt6 * 4096}")

    def q_read(self, ldsbase):
        p = self.p
        t0, t1, t2 = vT, vT + 1, vT + 2
        p.e(f"v_lshrrev_b32 v{t0}, 4, v0")
        p.e(f"v_and_b32 v{t1}, 15, v0")
        p.e(f"v_xor_b32 v{t2}, v{t0}, v{t1}")
        p.e(f"v_lshlrev_b32 v{t2}, 4, v{t2}")
        p.e(f"v_lshl_add_u32 v{t2}, v{t1}, 8, v{t2}")
        p.e(f"s_mul_i32 s{sT0}, s{sI}, {48 * 256}")
        if ldsbase:
            p.e(f"s_add_u32 s{sT0}, s{sT0}, {ldsbase}")
        p.e(f"v_add_u32 v{vM}, s{sT0}, v{t2}")
        for s in range(1, 4):
            p.e(f"v_xor_b32 v{vM + s}, {s << 6}, v{vM}")
        for s in range(4):
            for qt in range(3):
                p.e(f"ds_read_b128 {ar(Qf(s, qt), 4)}, v{vM + s} offset:{qt * 4096}")

    def side_setup(self):
        p = self.p
        p.e(f"s_mul_i32 s{sT0}, s{sB2}, 98304")
        for n, dst in ((0, sSX0), (1, sSX1)):
            p.e(f"s_lshl_b32 s{sT1}, s{sW}, 1")
            p.e(f"s_add_u32 s{sT1}, s{sT1}, {n}")
            p.e(f"s_cmp_ge_u32 s{sT1}, 6")
            p.e(f"s_cselect_b32 s{sT2}, 6, 0")
            p.e(f"s_sub_u32 s{sT1}, s{sT1}, s{sT2}")
            p.e(f"s_lshl_b32 s{sT1}, s{sT1}, 14")
            p.e(f"s_add_u32 s{dst}, s{sT1}, s{sT0}")
        p.e(f"s_lshl_b32 s{sT0}, s{sJ}, 4")
        p.e(f"s_lshl_b32 s{sT1}, s{sI}, 2")
        p.e(f"s_add_u32 s{sT0}, s{sT0}, s{sT1}")
        p.e(f"s_lshl_b32 s{sT0}, s{sT0}, 13")
        p.e(f"s_lshl_b32 s{sT1}, s{sH}, 8")
        p.e(f"s_add_u32 s{sSW}, s{sT0}, s{sT1}")
        p.e(f"s_lshl_b32 s{sSM}, s{sW}, 11")
        p.e(f"s_add_u32 s{sSM}, s{sSM}, {SIDE[0]}")
        p.e(f"s_mov_b32 s{sSR}, {SIDE[0]}")

    def side_dma(self):
        p = self.p
        p.e(f"s_mov_b32 m0, s{sSM}")
        self.vm('side', f"buffer_load_dwordx4 v{vXd}, {srd(sX)}, s{sSX0} offen {self.fx} lds")
        p.e(f"s_add_u32 m0, s{sSM}, 1024")
        self.vm('side', f"buffer_load_dwordx4 v{vXd}, {srd(sX)}, s{sSX1} offen {self.fx} lds")
        p.e(f"s_add_u32 m0, s{sSM}, 0x2000")
        self.vm('side', f"buffer_load_dwordx4 v{vWd}, {srd(sWQ)}, s{sSW} offen {self.fx} lds")
        p.e(f"s_add_u32 m0, s{sSM}, 0x2400")
        p.e(f"s_add_u32 s{sT2}, s{sSW}, {8 * 8192}")
        self.vm('side', f"buffer_load_dwordx4 v{vWd + 1}, {srd(sWQ)}, s{sT2} offen {self.fx} lds")
        p.e(f"s_add_u32 s{sSX0}, s{sSX0}, 64")
        p.e(f"s_add_u32 s{sSX1}, s{sSX1}, 64")
        p.e(f"s_add_u32 s{sSW}, s{sSW}, {32 * 8192}")
        p.e(f"s_xor_b32 s{sSM}, s{sSM}, {SIDE[0] ^ SIDE[1]}")

    def side_compute(self, first):
        p = self.p
        vXr, vW0 = vT + 3, vT + 4
        p.e(f"v_add_u32 v{vXr}, s{sSR}, v{vLin}")
        p.e(f"s_add_u32 s{sT2}, s{sSR}, 0x2000")
        p.e(f"v_add_u32 v{vW0}, s{sT2}, v{vWr}")
        p.e(f"v_add_u32 v{vW0 + 1}, s{sT2}, v{vWr + 1}")
        p.e(f"s_xor_b32 s{sSR}, s{sSR}, {SIDE[0] ^ SIDE[1]}")
        for dt2 in range(2):
            a0 = aW + dt2 * 4
            p.e(f"ds_read_b64_tr_b16 {ar(a0, 2)}, v{vW0 + dt2}")
            p.e(f"ds_read_b64_tr_b16 {ar(a0 + 2, 2)}, v{vW0 + dt2} offset:4096")
        for qt6 in range(6):
            p.e(f"ds_read_b128 {ar(aX + qt6 * 4, 4)}, v{vXr} offset:{qt6 * 1024}")
        for qt6 in range(6):
            for dt2 in range(2):
                acc = vr(self.QA(vR, dt2, qt6), 4)
                p.e(f"{MF} {acc}, {ar(aW + dt2 * 4, 4)}, {ar(aX + qt6 * 4, 4)}, {'0' if first else acc}")

    def wo_issue(self):
        p = self.p
        t0, t1 = vT, vT + 1
        p.e(f"v_lshrrev_b32 v{t0}, 3, v0")
        p.e(f"v_and_b32 v{t1}, 7, v0")
        p.e(f"v_lshlrev_b32 v{t1}, 4, v{t1}")
        p.e(f"v_lshl_add_u32 v{vM + 8}, v{t0}, 10, v{t1}")
        p.e(f"s_lshr_b32 s{sT0}, s2, 3")
        p.e(f"s_lshl_b32 s{sT0}, s{sT0}, 2")
        p.e(f"s_add_u32 s{sT0}, s{sT0}, s{sW}")
        p.e(f"s_lshl_b32 s{sT0}, s{sT0}, 15")
        p.e(f"s_and_b32 s{sT1}, s2, 7")
        p.e(f"s_lshl_b32 s{sT1}, s{sT1}, 7")
        p.e(f"s_add_u32 s{sT0}, s{sT0}, s{sT1}")
        p.e(f"s_lshl_b32 s{sT2}, s{sW}, 12")
        for ii in range(4):
            p.e(f"s_add_u32 m0, s{sT2}, {WOST + ii * 1024}")
            p.e(f"s_add_u32 s{sT1}, s{sT0}, {ii * 8192}")
            self.vm('wo', f"buffer_load_dwordx4 v{vM + 8}, {srd(sWO)}, s{sT1} offen {self.fx} lds")

    def wo_finish(self):
        p = self.p
        t0, t1 = vT, vT + 1
        d0 = vM
        p.e(f"v_lshrrev_b32 v{t0}, 2, v0")
        p.e(f"v_lshlrev_b32 v{t0}, 7, v{t0}")
        p.e(f"v_and_b32 v{t1}, 3, v0")
        p.e(f"v_lshl_add_u32 v{t0}, v{t1}, 4, v{t0}")
        p.e(f"s_lshl_b32 s{sT0}, s{sW}, 12")
        p.e(f"s_add_u32 s{sT0}, s{sT0}, {WOST}")
        p.e(f"v_add_u32 v{t0}, s{sT0}, v{t0}")
        p.e(f"s_and_b32 s{sT0}, s2, 7")
        p.e(f"s_lshl_b32 s{sT0}, s{sT0}, 6")
        p.e(f"s_lshr_b32 s{sT1}, s2, 3")
        p.e(f"s_add_u32 s{sT0}, s{sT0}, s{sT1}")
        p.e(f"s_lshl_b32 s{sT0}, s{sT0}, 2")
        p.e(f"s_add_u32 s{sT0}, s{sT0}, s{sW}")
        p.e(f"s_lshl_b32 s{sT0}, s{sT0}, 11")
        p.e(f"s_add_u32 s{sT0}, s{sT0}, {WS_WOP}")
        p.e(f"s_add_u32 s{sT1}, s{sT0}, {32 * 4 * 2048}")
        for t in range(2):
            for c2 in range(2):
                d = d0 + (t * 2 + c2) * 4
                off = 64 * t + 8 * c2
                p.e(f"ds_read_b64_tr_b16 {vr(d, 2)}, v{t0} offset:{off}")
                p.e(f"ds_read_b64_tr_b16 {vr(d + 2, 2)}, v{t0} offset:{off + 2048}")
        for t in range(2):
            for c2 in range(2):
                d = d0 + (t * 2 + c2) * 4
                self.vm('wost', f"buffer_store_dwordx4 {vr(d, 4)}, v{vLin}, {srd(sWS)}, s{sT0 + t} offen offset:{c2 * 1024} {self.fst}")

    def k_reads(self):
        p = self.p
        for s in range(4):
            for kt in range(2):
                p.e(f"ds_read_b128 {ar(Kf(kt, s), 4)}, v{vKr + s} offset:{kt * 4096}")

    def v_reads(self):
        p = self.p
        for dt in range(8):
            p.e(f"ds_read_b64_tr_b16 {ar(Vf(dt), 2)}, v{vVr + dt}")
            p.e(f"ds_read_b64_tr_b16 {ar(Vf(dt) + 2, 2)}, v{vVr + dt} offset:4096")

    def qk(self, first):
        p = self.p
        for qt in range(3):
            for s in range(4):
                for kt in range(2):
                    acc = vr(S(kt, qt), 4)
                    if s == 0:
                        cin = "0" if first else vr(vNM + 4 * qt, 4)
                    else:
                        cin = acc
                    p.e(f"{MF} {acc}, {ar(Kf(kt, s), 4)}, {ar(Qf(s, qt), 4)}, {cin}")

    def tile_max(self, qt, dst):
        p = self.p
        a, b = S(0, qt), S(1, qt)
        p.e(f"v_max3_f32 v{dst}, v{a}, v{a + 1}, v{a + 2}")
        p.e(f"v_max3_f32 v{dst + 1}, v{a + 3}, v{b}, v{b + 1}")
        p.e(f"v_max3_f32 v{dst + 1}, v{dst + 1}, v{b + 2}, v{b + 3}")
        p.e(f"v_max_f32 v{dst}, v{dst}, v{dst + 1}")

    def xlane_max(self, r, tmp):
        p = self.p
        p.e(f"v_mov_b32 v{tmp}, v{r}")
        p.e(f"v_permlane16_swap_b32 v{r}, v{tmp}")
        p.e(f"v_max_f32 v{r}, v{r}, v{tmp}")
        p.e(f"v_mov_b32 v{tmp}, v{r}")
        p.e(f"v_permlane32_swap_b32 v{r}, v{tmp}")
        p.e(f"v_max_f32 v{r}, v{r}, v{tmp}")

    def exp_cvt(self):
        p = self.p
        for qt in range(3):
            for kt in range(2):
                s = S(kt, qt)
                for r in range(4):
                    p.e(f"v_exp_f32 v{s + r}, v{s + r}")
                p.e(f"v_cvt_pk_bf16_f32 v{vP + 4 * qt + 2 * kt}, v{s}, v{s + 1}")
                p.e(f"v_cvt_pk_bf16_f32 v{vP + 4 * qt + 2 * kt + 1}, v{s + 2}, v{s + 3}")

    def pv(self, first):
        p = self.p
        for qt in range(3):
            for dt in range(8):
                acc = vr(O(dt, qt), 4)
                p.e(f"{MF} {acc}, {ar(Vf(dt), 4)}, {vr(vP + 4 * qt, 4)}, {'0' if first else acc}")
            acc = vr(vL + 4 * qt, 4)
            p.e(f"{MF} {acc}, {vr(vONE, 4)}, {vr(vP + 4 * qt, 4)}, {'0' if first else acc}")

    def advance_slots(self):
        p = self.p
        p.e(f"s_add_u32 s{sRS}, s{sRS}, {SLOT}")
        p.e(f"s_cmp_ge_u32 s{sRS}, {3 * SLOT}")
        p.e(f"s_cselect_b32 s{sT2}, {3 * SLOT}, 0")
        p.e(f"s_sub_u32 s{sRS}, s{sRS}, s{sT2}")
        p.e(f"s_sub_u32 s{sDL}, {SLOT}, s{sT2}")
        for k in range(4):
            p.e(f"v_add_u32 v{vKr + k}, s{sDL}, v{vKr + k}")
        for k in range(8):
            p.e(f"v_add_u32 v{vVr + k}, s{sDL}, v{vVr + k}")

    def tile(self, first, side=None, rare_label=None, back_label=None, pre=None, post=None, nowait=False, hook=None):
        p = self.p
        if not nowait:
            p.e("s_waitcnt vmcnt(8)")
        p.e("s_barrier")
        if hook:
            hook()
        p.begin()
        if pre:
            pre()
        if side:
            self.side_dma()
        self.k_reads()
        self.v_reads()
        self.qk(first)
        if side in ('both', 'first'):
            self.side_compute(side == 'first')
        for qt in range(3):
            self.tile_max(qt, vM + 2 * qt)
        if first:
            for qt in range(3):
                self.xlane_max(vM + 2 * qt, vM + 2 * qt + 1)
                for k in range(4):
                    p.e(f"v_sub_f32 v{vNM + 4 * qt + k}, 0, v{vM + 2 * qt}")
                for kt in range(2):
                    for r in range(4):
                        x = S(kt, qt) + r
                        p.e(f"v_sub_f32 v{x}, v{x}, v{vM + 2 * qt}")
        else:
            p.e(f"v_max3_f32 v{vM + 6}, v{vM}, v{vM + 2}, v{vM + 4}")
            p.e(f"v_cmp_lt_f32 vcc, {THRESH_LIT}, v{vM + 6}")
        p.end("tileA")
        if not first:
            p.e(f"s_cbranch_vccnz {rare_label}")
            p.label(back_label)
        p.begin()
        self.dma_kv()
        self.exp_cvt()
        self.pv(first)
        self.advance_slots()
        p.end("tileB")
        if post:
            post()

    def rare(self, rare_label, back_label):
        p = self.p
        p.label(rare_label)
        for qt in range(3):
            m = vM + 2 * qt
            self.xlane_max(m, m + 1)
            p.e(f"v_max_f32 v{m}, 0, v{m}")
            for k in range(4):
                p.e(f"v_sub_f32 v{vNM + 4 * qt + k}, v{vNM + 4 * qt + k}, v{m}")
            for kt in range(2):
                for r in range(4):
                    x = S(kt, qt) + r
                    p.e(f"v_sub_f32 v{x}, v{x}, v{m}")
            p.e(f"v_sub_f32 v{m + 1}, 0, v{m}")
            p.e(f"v_exp_f32 v{m + 1}, v{m + 1}")
            for dt in range(8):
                for r in range(4):
                    x = O(dt, qt) + r
                    p.e(f"v_mul_f32 v{x}, v{x}, v{m + 1}")
            for r in range(4):
                x = vL + 4 * qt + r
                p.e(f"v_mul_f32 v{x}, v{x}, v{m + 1}")
        p.e(f"s_branch {back_label}")

    def tile_loop(self, n, side, hook=None):
        p = self.p
        rare, back, loop = self.L("L_rare"), self.L("L_back"), self.L("L_loop")
        self.rares.append((rare, back))
        p.e(f"s_mov_b32 s{sCNT}, {n}")
        p.label(loop)
        p.e(f"s_cmp_eq_u32 s{sCNT}, 2")
        p.e(f"s_cselect_b32 s{sKVG}, s{sNEXT}, s{sKVG}")
        save = list(self.fifo)
        self.tile(False, side, rare, back, hook=hook)
        self.fifo = save
        if not self.fine:
            self.stamp_dyn()
        p.e(f"s_sub_u32 s{sCNT}, s{sCNT}, 1")
        p.e(f"s_cmp_lg_u32 s{sCNT}, 0")
        p.e(f"s_cbranch_scc1 {loop}")

    def o_send(self):
        p = self.p
        t0 = vT
        p.e(f"s_mul_i32 s{sT0}, s{sW}, {12 * 1024}")
        p.e(f"s_add_u32 s{sT0}, s{sT0}, {OEX}")
        p.e(f"v_add_u32 v{t0 + 4}, s{sT0}, v{vLin}")
        for t in range(4):
            for qt in range(3):
                p.e(f"ds_write_b128 v{t0 + 4}, {vr(O(4 + t, qt), 4)} offset:{(t * 3 + qt) * 1024}")
        for qt in range(3):
            p.e(f"v_mov_b32 v{vM + qt}, v{vNM + 4 * qt}")
            p.e(f"v_mov_b32 v{vM + 3 + qt}, v{vL + 4 * qt}")
        p.e(f"v_lshrrev_b32 v{t0 + 5}, 1, v{vLin}")
        p.e(f"s_lshl_b32 s{sT1}, s{sW}, 11")
        p.e(f"s_add_u32 s{sT1}, s{sT1}, {OEX + 48 * 1024}")
        p.e(f"v_add_u32 v{t0 + 5}, s{sT1}, v{t0 + 5}")
        for k in range(3):
            p.e(f"ds_write_b64 v{t0 + 5}, {vr(vM + 2 * k, 2)} offset:{512 * k}")

    def o_recv(self, sBx, sHx):
        p = self.p
        t0 = vT
        p.e(f"s_xor_b32 s{sT2}, s{sW}, 1")
        p.e(f"s_mul_i32 s{sT0}, s{sT2}, {12 * 1024}")
        p.e(f"s_add_u32 s{sT0}, s{sT0}, {OEX}")
        p.e(f"v_add_u32 v{t0 + 4}, s{sT0}, v{vLin}")
        p.e(f"v_lshrrev_b32 v{t0 + 5}, 1, v{vLin}")
        p.e(f"s_lshl_b32 s{sT1}, s{sT2}, 11")
        p.e(f"s_add_u32 s{sT1}, s{sT1}, {OEX + 48 * 1024}")
        p.e(f"v_add_u32 v{t0 + 5}, s{sT1}, v{t0 + 5}")
        for k in range(3):
            p.e(f"ds_read_b64 {vr(vM + 8 + 2 * k, 2)}, v{t0 + 5} offset:{512 * k}")
        for qt in range(3):
            for t in range(4):
                p.e(f"ds_read_b128 {vr(vR + (t * 3 + qt) * 4, 4)}, v{t0 + 4} offset:{(t * 3 + qt) * 1024}")
        p.e(f"s_lshl_b32 s{sT0}, s{sBx}, 1")
        p.e(f"s_add_u32 s{sT0}, s{sT0}, s{sI}")
        p.e(f"s_lshl_b32 s{sT0}, s{sT0}, 5")
        p.e(f"s_add_u32 s{sT0}, s{sT0}, s{sHx}")
        p.e(f"s_lshl_b32 s{sT0}, s{sT0}, 1")
        p.e(f"s_add_u32 s{sT0}, s{sT0}, s{sJ}")
        p.e(f"s_mul_i32 s{sT0}, s{sT0}, 6144")
        if WS_O:
            p.e(f"s_add_u32 s{sT0}, s{sT0}, {WS_O}")
        p.e(f"s_add_u32 s{sT1}, s{sT0}, 3072")
        for qt in range(3):
            nb, lb = vM + 8 + qt, vM + 11 + qt
            na, la = vNM + 4 * qt, vL + 4 * qt
            mn = vS + 4 * qt
            p.e(f"v_min_f32 v{mn}, v{na}, v{nb}")
            p.e(f"v_sub_f32 v{mn + 1}, v{mn}, v{na}")
            p.e(f"v_sub_f32 v{mn + 2}, v{mn}, v{nb}")
            p.e(f"v_exp_f32 v{mn + 1}, v{mn + 1}")
            p.e(f"v_exp_f32 v{mn + 2}, v{mn + 2}")
            p.e(f"v_mul_f32 v{mn + 3}, v{mn + 1}, v{la}")
            p.e(f"v_fmac_f32 v{mn + 3}, v{mn + 2}, v{lb}")
            p.e(f"v_rcp_f32 v{mn + 3}, v{mn + 3}")
            p.e(f"v_mul_f32 v{mn + 1}, v{mn + 1}, v{mn + 3}")
            p.e(f"v_mul_f32 v{mn + 2}, v{mn + 2}, v{mn + 3}")
            for u2 in range(2):
                for t in (2 * u2, 2 * u2 + 1):
                    o, rc = O(t, qt), vR + (t * 3 + qt) * 4
                    for r in range(4):
                        p.e(f"v_mul_f32 v{o + r}, v{mn + 1}, v{o + r}")
                        p.e(f"v_fmac_f32 v{o + r}, v{mn + 2}, v{rc + r}")
                d = vR + ((2 * u2) * 3 + qt) * 4
                a, b = O(2 * u2, qt), O(2 * u2 + 1, qt)
                p.e(f"v_cvt_pk_bf16_f32 v{d}, v{a}, v{a + 1}")
                p.e(f"v_cvt_pk_bf16_f32 v{d + 1}, v{a + 2}, v{a + 3}")
                p.e(f"v_cvt_pk_bf16_f32 v{d + 2}, v{b}, v{b + 1}")
                p.e(f"v_cvt_pk_bf16_f32 v{d + 3}, v{b + 2}, v{b + 3}")
                self.vm('ost', f"buffer_store_dwordx4 {vr(d, 4)}, v{vLin}, {srd(sWS)}, s{sT0 + u2} offen offset:{qt * 1024} {self.fst}")

    def flag_index(self, dst, sBx, sHx, rnd):
        p = self.p
        p.e(f"s_and_b32 s{dst}, s{sBx}, 7")
        p.e(f"s_lshl_b32 s{dst}, s{dst}, 5")
        p.e(f"s_add_u32 s{dst}, s{dst}, s{sHx}")
        p.e(f"s_lshl_b32 s{dst}, s{dst}, 2")
        p.e(f"s_add_u32 s{dst}, s{dst}, {WS_FLAG + rnd * 1024}")

    def wave0(self):
        lab = self.L("L_w0")
        self.p.e(f"s_cmp_lg_u32 s{sW}, 0")
        self.p.e(f"s_cbranch_scc1 {lab}")
        return lab

    def one_lane(self):
        self.p.e("s_mov_b64 exec, 1")

    def all_lanes(self):
        self.p.e("s_mov_b64 exec, -1")

    def flags_clear(self):
        p = self.p
        lab = self.wave0()
        self.flag_index(sT2, sB, sH, 0)
        p.e(f"v_mov_b32 v{vM + 12}, 0")
        p.e(f"v_mov_b32 v{vM + 13}, 0")
        self.one_lane()
        p.e(f"buffer_store_dword v{vM + 12}, v{vM + 13}, {srd(sWS)}, s{sT2} offen sc1")
        p.e(f"buffer_store_dword v{vM + 12}, v{vM + 13}, {srd(sWS)}, s{sT2} offen offset:1024 sc1")
        self.all_lanes()
        p.label(lab)

    def init_arrive(self):
        p = self.p
        lab = self.wave0()
        p.e(f"v_mov_b32 v{vM + 12}, 1")
        p.e(f"v_mov_b32 v{vM + 13}, 0")
        self.one_lane()
        p.e(f"buffer_atomic_add v{vM + 12}, v{vM + 13}, {srd(sDBG)}, 0 offen sc1")
        self.all_lanes()
        p.label(lab)

    def flag_set(self, sBx, sHx, rnd):
        p = self.p
        lab = self.wave0()
        self.flag_index(sT2, sBx, sHx, rnd)
        p.e(f"v_mov_b32 v{vM + 12}, 1")
        p.e(f"v_mov_b32 v{vM + 13}, 0")
        self.one_lane()
        p.e(f"buffer_store_dword v{vM + 12}, v{vM + 13}, {srd(sWS)}, s{sT2} offen sc1")
        self.all_lanes()
        p.label(lab)

    def spin(self, top):
        p = self.p
        done = self.L("L_done")
        p.e(f"s_cbranch_vccz {done}")
        p.e(f"s_sub_u32 s{sT3}, s{sT3}, 1")
        p.e(f"s_cbranch_scc0 {top}")
        p.label(done)

    def poll_init_and_f0(self):
        p = self.p
        lab = self.wave0()
        l1, l2 = self.L("L_p"), self.L("L_p")
        p.e(f"v_mov_b32 v{vM + 13}, 0")
        p.e(f"s_mov_b32 s{sT3}, 0x200000")
        p.label(l1)
        p.e(f"buffer_load_dword v{vM + 12}, v{vM + 13}, {srd(sDBG)}, 0 offen sc1")
        p.e("s_waitcnt vmcnt(0)")
        p.e(f"v_cmp_ne_u32 vcc, 0x100, v{vM + 12}")
        self.spin(l1)
        p.e(f"s_mov_b32 s{sT2}, {WS_FLAG}")
        p.label(l2)
        p.e(f"buffer_load_dwordx4 {vr(vM + 8, 4)}, v{vLin}, {srd(sWS)}, s{sT2} offen sc1")
        p.e("s_waitcnt vmcnt(0)")
        p.e(f"v_and_b32 v{vM + 8}, v{vM + 8}, v{vM + 9}")
        p.e(f"v_and_b32 v{vM + 10}, v{vM + 10}, v{vM + 11}")
        p.e(f"v_and_b32 v{vM + 8}, v{vM + 8}, v{vM + 10}")
        p.e(f"v_cmp_ne_u32 vcc, 1, v{vM + 8}")
        self.spin(l2)
        p.label(lab)

    def poll_f1(self, sBx):
        p = self.p
        lab = self.wave0()
        l1 = self.L("L_p")
        p.e(f"s_and_b32 s{sT2}, s{sBx}, 7")
        p.e(f"s_lshl_b32 s{sT2}, s{sT2}, 7")
        p.e(f"s_add_u32 s{sT2}, s{sT2}, {WS_FLAG + 1024}")
        p.e(f"v_and_b32 v{vM + 13}, 31, v0")
        p.e(f"v_lshlrev_b32 v{vM + 13}, 2, v{vM + 13}")
        p.e(f"s_mov_b32 s{sT3}, 0x200000")
        p.label(l1)
        p.e(f"buffer_load_dword v{vM + 12}, v{vM + 13}, {srd(sWS)}, s{sT2} offen sc1")
        p.e("s_waitcnt vmcnt(0)")
        p.e(f"v_cmp_ne_u32 vcc, 1, v{vM + 12}")
        self.spin(l1)
        p.label(lab)

    def op_ids(self):
        p = self.p
        p.e(f"s_and_b32 s{sT0}, s2, 7")
        p.e(f"s_lshr_b32 s{sT1}, s2, 3")
        p.e(f"s_lshr_b32 s{sT2}, s{sT0}, 1")
        p.e(f"s_lshl_b32 s{sT2}, s{sT2}, 1")
        p.e(f"s_lshr_b32 s{sT3}, s{sT1}, 4")
        p.e(f"s_add_u32 s{sB}, s{sT2}, s{sT3}")
        p.e(f"s_lshr_b32 s{sI}, s{sT1}, 3")
        p.e(f"s_and_b32 s{sI}, s{sI}, 1")
        p.e(f"s_and_b32 s{sT0}, s{sT0}, 1")
        p.e(f"s_lshl_b32 s{sT0}, s{sT0}, 3")
        p.e(f"s_and_b32 s{sT1}, s{sT1}, 7")
        p.e(f"s_add_u32 s{sH}, s{sT0}, s{sT1}")

    def op_offsets(self, with_w):
        p = self.p
        p.e(f"s_lshl_b32 s{sT0}, s{sB}, 1")
        p.e(f"s_add_u32 s{sT0}, s{sT0}, s{sI}")
        p.e(f"s_lshl_b32 s{sT0}, s{sT0}, 7")
        p.e(f"s_lshl_b32 s{sT1}, s{sW}, 5")
        p.e(f"s_add_u32 s{sT0}, s{sT0}, s{sT1}")
        p.e(f"s_mul_i32 s{sO}, s{sT0}, 3072")
        if WS_O:
            p.e(f"s_add_u32 s{sO}, s{sO}, {WS_O}")
        if with_w:
            p.e(f"s_lshl_b32 s{sT0}, s{sH}, 7")
            p.e(f"s_add_u32 s{sT0}, s{sT0}, s{sT1}")
            p.e(f"s_lshl_b32 s{sT0}, s{sT0}, 11")
            p.e(f"s_add_u32 s{sWp}, s{sT0}, {WS_WOP}")

    def op_tile(self, with_w):
        p = self.p
        acc0 = 8
        buf0 = 32
        PD = 11 if with_w else 18
        assert buf0 + PD * 12 <= 256
        self.op_offsets(with_w)
        per = 5 if with_w else 3

        def st(k):
            return buf0 + (k % PD) * 12

        def issue(k):
            b = st(k)
            if with_w:
                for c2 in range(2):
                    self.vm(f"k{k}", f"buffer_load_dwordx4 {ar(k * 8 + 4 * c2, 4)}, v{vLin2}, {srd(sWS)}, s{sWp} offen offset:{c2 * 1024} {self.fld}")
                p.e(f"s_add_u32 s{sWp}, s{sWp}, 2048")
            for qt in range(3):
                self.vm(f"k{k}", f"buffer_load_dwordx4 {vr(b + 4 * qt, 4)}, v{vLin2}, {srd(sWS)}, s{sO} offen offset:{qt * 1024} {self.fld}")
            p.e(f"s_add_u32 s{sO}, s{sO}, 3072")
        vLin2 = 2
        for k in range(PD):
            issue(k)
        for k in range(32):
            self.wait(f"k{k}")
            b = st(k)
            for c2 in range(2):
                for qt in range(3):
                    acc = vr(acc0 + (c2 * 3 + qt) * 4, 4)
                    p.e(f"{MF} {acc}, {ar(k * 8 + 4 * c2, 4)}, {vr(b + 4 * qt, 4)}, {'0' if k == 0 else acc}")
            if k + PD < 32:
                issue(k + PD)
        p.e(f"s_mul_i32 s{sT0}, s{sW}, 6144")
        p.e(f"s_add_u32 s{sT0}, s{sT0}, {RED}")
        p.e(f"v_add_u32 v3, s{sT0}, v2")
        p.e("s_barrier")
        for c2 in range(2):
            for qt in range(3):
                p.e(f"ds_write_b128 v3, {vr(acc0 + (c2 * 3 + qt) * 4, 4)} offset:{(c2 * 3 + qt) * 1024}")
        p.e("s_waitcnt lgkmcnt(0)")
        p.e("s_barrier")
        skip = self.L("L_skip")
        p.e(f"s_cmp_eq_u32 s{sW}, 3")
        p.e(f"s_cbranch_scc1 {skip}")
        p.e(f"s_lshl_b32 s{sT0}, s{sW}, 10")
        p.e(f"s_add_u32 s{sT0}, s{sT0}, {RED}")
        p.e(f"v_add_u32 v3, s{sT0}, v2")
        p.begin()
        for c2 in range(2):
            for ww in range(4):
                p.e(f"ds_read_b128 {vr(32 + (c2 * 4 + ww) * 4, 4)}, v3 offset:{ww * 6144 + c2 * 3072}")
        for c2 in range(2):
            b = 32 + c2 * 16
            for r in range(4):
                p.e(f"v_add_f32 v{b + r}, v{b + r}, v{b + 4 + r}")
                p.e(f"v_add_f32 v{b + 8 + r}, v{b + 8 + r}, v{b + 12 + r}")
                p.e(f"v_add_f32 v{b + r}, v{b + r}, v{b + 8 + r}")
        p.e("v_cvt_pk_bf16_f32 v64, v32, v33")
        p.e("v_cvt_pk_bf16_f32 v65, v34, v35")
        p.e("v_cvt_pk_bf16_f32 v66, v48, v49")
        p.e("v_cvt_pk_bf16_f32 v67, v50, v51")
        p.e("v_and_b32 v4, 15, v0")
        p.e("v_lshrrev_b32 v5, 4, v0")
        p.e("v_lshlrev_b32 v5, 4, v5")
        p.e("v_lshl_add_u32 v4, v4, 10, v5")
        p.e(f"s_mul_i32 s{sT0}, s{sB}, 96")
        p.e(f"s_mul_i32 s{sT1}, s{sI}, 48")
        p.e(f"s_add_u32 s{sT0}, s{sT0}, s{sT1}")
        p.e(f"s_lshl_b32 s{sT1}, s{sW}, 4")
        p.e(f"s_add_u32 s{sT0}, s{sT0}, s{sT1}")
        p.e(f"s_lshl_b32 s{sT0}, s{sT0}, 10")
        p.e(f"s_lshl_b32 s{sT1}, s{sH}, 6")
        p.e(f"s_add_u32 s{sT0}, s{sT0}, s{sT1}")
        p.e(f"buffer_store_dwordx4 v[64:67], v4, {srd(sOUT)}, s{sT0} offen")
        p.end("opfin")
        p.label(skip)

    def kernel(self):
        p = self.p
        p.raw(f".globl {KN}\n.p2align 8\n.type {KN},@function")
        p.label(KN)
        self.load_args()
        if self.trace:
            p.e(f"s_mov_b32 s{sTR}, 16")
        self.stamp()
        p.begin()
        self.setup_dma_addr()
        self.head_ids(sB, sH, 0)
        self.qproj_setup()
        for c in range(3):
            if self.fine:
                p.end("x"); self.stamp_dyn(); p.begin()
            self.dma_chunk64(c)
        self.kv_base(sKVG, sB, sH)
        p.e(f"s_lshl_b32 s{sMK}, s{sW}, 12")
        if self.fine:
            p.end("x"); self.stamp_dyn(); p.begin()
        self.dma_kv('kv0')
        if self.fine:
            p.end("x"); self.stamp_dyn(); p.begin()
        self.dma_kv('kv1')
        if self.fine:
            p.end("x"); self.stamp_dyn(); p.begin()
        self.setup_read_addr()
        p.e(f"s_add_u32 s{sB2}, s{sB}, 8")
        self.kv_base(sNEXT, sB2, sH)
        p.e(f"s_mov_b32 s{sRS}, 0")
        self.side_setup()
        p.end("prologue")
        self.flags_clear()
        self.stamp()
        for c in range(8):
            self.wait(f"c{c}")
            if self.fine:
                self.stamp_dyn()
            p.e("s_barrier")
            p.begin()
            if 1 <= c and c + 2 < 8:
                self.dma_chunk64(c + 2)
            self.qproj_chunk64(c)
            p.end(f"qproj{c}")
            if self.fine:
                self.stamp_dyn()
        assert not self.fifo
        self.init_arrive()
        p.begin()
        self.q_write(vO, Q1X)
        p.end("qw")
        p.e("s_waitcnt lgkmcnt(0)")
        p.e("s_barrier")
        p.begin()
        self.q_read(Q1X)
        p.end("qr")
        p.e("s_waitcnt lgkmcnt(0)")
        self.stamp()
        def post0():
            self.wait('wo')
            p.begin()
            self.wo_finish()
            p.end("wofin")
        self.tile(True, side='issue', pre=self.wo_issue, post=post0, nowait=True)
        self.stamp_dyn()
        rare, back = self.L("L_rare"), self.L("L_back")
        self.rares.append((rare, back))
        self.tile(False, 'first', rare, back)
        self.stamp_dyn()
        self.fifo = ['side'] * 4 + ['kv'] * 8
        self.tile_loop(14, 'both')
        self.stamp()
        p.e("s_waitcnt vmcnt(8)")
        p.e("s_barrier")
        p.begin()
        self.side_compute(False)
        p.end("side15")
        p.e("s_waitcnt lgkmcnt(0)")
        p.e("s_barrier")
        p.begin()
        self.o_send()
        self.q_write(vR, Q2X)
        p.end("bndw")
        p.e("s_waitcnt lgkmcnt(0)")
        p.e("s_barrier")
        self.fifo = ['kv'] * 8
        p.begin()
        self.q_read(Q2X)
        self.o_recv(sB, sH)
        p.end("bndr")
        p.e("s_waitcnt lgkmcnt(0)")
        p.e(f"s_mov_b32 s{sNEXT}, {KVB:#x}")
        self.stamp()
        self.fifo = []
        p.e(f"s_mov_b32 s{sBo}, s{sB}")
        p.e(f"s_mov_b32 s{sB}, s{sB2}")
        self.tile(True, nowait=True)
        self.stamp_dyn()

        def publish0():
            lab = self.L("L_nopub")
            p.e(f"s_cmp_lg_u32 s{sCNT}, 15")
            p.e(f"s_cbranch_scc1 {lab}")
            self.flag_set(sBo, sH, 0)
            p.label(lab)
        self.tile_loop(15, None, hook=publish0)
        self.stamp()
        p.begin()
        self.o_send()
        p.end("endw")
        p.e("s_waitcnt lgkmcnt(0)")
        p.e("s_barrier")
        self.fifo = []
        p.begin()
        self.o_recv(sB, sH)
        p.end("endr")
        p.e("s_waitcnt vmcnt(0)")
        self.fifo = []
        p.e("s_barrier")
        self.flag_set(sB, sH, 1)
        self.stamp()
        self.poll_init_and_f0()
        p.e("s_barrier")
        self.op_ids()
        p.e("v_lshlrev_b32 v2, 4, v0")
        self.op_tile(True)
        self.stamp()
        p.e(f"s_add_u32 s{sB}, s{sB}, 8")
        self.poll_f1(sB)
        p.e("s_barrier")
        self.stamp()
        self.fifo = []
        self.op_tile(False)
        self.stamp()
        self.trace_dump()
        p.label("L_end")
        p.e("s_endpgm")
        for rare, back in self.rares:
            self.rare(rare, back)
        p.label("L_codeend")
        p.e("s_endpgm")


def desc(name, vgpr, accum, sgpr=NSGPR):
    return f""".amdhsa_kernel {name}
  .amdhsa_next_free_vgpr {vgpr}
  .amdhsa_next_free_sgpr {sgpr}
  .amdhsa_accum_offset {accum}
  .amdhsa_group_segment_fixed_size 0
  .amdhsa_kernarg_size 64
  .amdhsa_user_sgpr_count 2
  .amdhsa_user_sgpr_kernarg_segment_ptr 1
  .amdhsa_system_sgpr_workgroup_id_x 1
  .amdhsa_float_denorm_mode_32 3
.end_amdhsa_kernel"""


def build(trace=False, **kw):
    g = Gen(trace=trace, **kw)
    hdr = f"""; Fused MHA block (Q projection, attention over the cached K/V, output projection), one workgroup per CU.
; @launch grid=(256,1,1) block=(256,1,1) lds={LDS_TOTAL}
.amdgcn_target "amdgcn-amd-amdhsa--gfx950"
.text"""
    g.p.raw(hdr)
    g.kernel()
    w, n = g.p.finalize()
    txt = g.p.text()
    txt += '.section .rodata,"a"\n.p2align 6\n' + desc(KN, 512, 256) + "\n"
    return txt, g, w, n


if __name__ == "__main__":
    import argparse
    ap = argparse.ArgumentParser()
    ap.add_argument("-o", default="standalone__mha_block_cached__near_ridge.s")
    ap.add_argument("--trace", action="store_true")
    ap.add_argument("--hmap", type=int, default=8)
    ap.add_argument("--fx", default="")
    ap.add_argument("--fst", default="sc1")
    ap.add_argument("--fld", default="sc1")
    ap.add_argument("--nopf", action="store_true")
    ap.add_argument("--fine", action="store_true")
    ap.add_argument("-v", action="store_true")
    a = ap.parse_args()
    txt, g, w, n = build(trace=a.trace, fx=a.fx, fst=a.fst, fld=a.fld, hmap=a.hmap, pf=not a.nopf, fine=a.fine)
    open(a.o, "w").write(txt)
    print("waits inserted", w, "nop states", n, "lines", txt.count("\n"))
    if a.v:
        for e in g.p.est:
            print(e)
```
